```python
import torch

def _softmax(x, axis=-1):
    return torch.softmax(x, dim=axis)
def _gelu(x):
    return torch.nn.functional.gelu(x, approximate="tanh")
def _silu(x):
    return torch.nn.functional.silu(x)
def _sigmoid(x):
    return torch.sigmoid(x)
def _layernorm(x, axis=-1, eps=1e-5):
    m = x.mean(dim=axis, keepdim=True)
    v = x.var(dim=axis, keepdim=True, unbiased=False)
    return (x - m) / torch.sqrt(v + eps)
def _scatter_add(tgt, idx, src, axis=0):
    return tgt.clone().index_add_(axis, idx, src)
def _segment_sum(src, seg, n):
    out = torch.zeros((n,) + src.shape[1:], dtype=src.dtype)
    return out.index_add_(0, seg, src)
def _pad(x, pw):
    flat = tuple(v for pair in reversed(pw) for v in pair)
    return torch.nn.functional.pad(x, flat)

kernel_name = 'standalone__window_attn_swin_v2__vision'

def setup_inputs():

    _w = (lambda a: (lambda t: t.to(torch.bfloat16) if t.is_floating_point() else t)(torch.as_tensor(a)))
    win = 7
    H = W = (512 // win) * win
    C = 96
    nh = 4
    shift = win // 2
    coords = torch.stack(torch.meshgrid(torch.arange(win), torch.arange(win), indexing="ij"), -1).reshape(-1, 2)
    rel = coords[:, None, :] - coords[None, :, :]
    rel_idx = ((rel[..., 0] + win - 1) * (2 * win - 1) + (rel[..., 1] + win - 1)).to(torch.int64)
    tab = torch.stack(torch.meshgrid(torch.arange(1 - win, win), torch.arange(1 - win, win), indexing="ij"), -1).reshape(-1, 2).to(float)
    tab = (lambda _x: torch.sign(torch.as_tensor(_x)))(tab) * (lambda _x: torch.log1p(torch.as_tensor(_x)))(torch.abs(tab))
    img = torch.zeros((H, W), dtype=torch.int64)
    cnt = 0
    for hs in (slice(0, H - win), slice(H - win, H - shift), slice(H - shift, H)):
        for ws in (slice(0, W - win), slice(W - win, W - shift), slice(W - shift, W)):
            img[hs, ws] = cnt; cnt += 1
    mw = img.reshape(H // win, win, W // win, win).permute(0, 2, 1, 3).reshape(-1, win * win)
    mask = (mw[:, :, None] != mw[:, None, :]).to(float) * (-100.0)
    return {
        "x": _w((lambda *s: torch.randn(*s, dtype=torch.bfloat16) * 0.05)(1, H, W, C)),
        "wqkv": _w((lambda *s: torch.randn(*s, dtype=torch.bfloat16) * 1.6)(C, 3 * C)),
        "wo": _w((lambda *s: torch.randn(*s, dtype=torch.bfloat16) * 0.05)(C, C)),
        "logit_scale": _w((lambda *s: torch.randn(*s, dtype=torch.bfloat16) * 1.6)(nh)),
        "cpb_w1": _w((lambda *s: torch.randn(*s, dtype=torch.bfloat16) * 0.8)(2, 4 * nh)),
        "cpb_w2": _w((lambda *s: torch.randn(*s, dtype=torch.bfloat16) * 0.8)(4 * nh, nh)),
        "rel_coords": _w(tab),
        "rel_idx": _w(rel_idx),
        "attn_mask": _w(mask),
    }

def reference(x, wqkv, wo, logit_scale, cpb_w1, cpb_w2, rel_coords, rel_idx, attn_mask):
    B, H, W, C = x.shape
    win = 7
    nh = 4
    hd = C // nh
    shift = win // 2
    ww = win * win
    nH, nW = H // win, W // win
    xs = torch.roll(x, (-shift, -shift), (1, 2))
    xw = (lambda x, *d: x.permute(*d))(xs.reshape(B, nH, win, nW, win, C), 0, 1, 3, 2, 4, 5).reshape(B * nH * nW, ww, C)
    qkv = (lambda x, *d: x.permute(*d))((xw @ wqkv).reshape(B * nH * nW, ww, 3, nh, hd), 2, 0, 3, 1, 4)
    q, k, v = qkv[0], qkv[1], qkv[2]
    qn = q * (torch.einsum("bhqd,bhqd->bhq", q, q)[..., None] + 1e-12) ** -0.5
    kn = k * (torch.einsum("bhkd,bhkd->bhk", k, k)[..., None] + 1e-12) ** -0.5
    logits = torch.einsum("bhqd,bhkd->bhqk", qn, kn)
    tau = torch.exp(torch.clip(logit_scale, -100.0, 4.6052))
    logits = logits * tau[None, :, None, None]
    hcpb = rel_coords @ cpb_w1
    hcpb = torch.where(hcpb > 0, hcpb, hcpb * 0)
    bias_tab = 16.0 * _sigmoid(hcpb @ cpb_w2)
    bias = (lambda x, *d: x.permute(*d))(bias_tab[rel_idx], 2, 0, 1)
    logits = logits.reshape(B, nH * nW, nh, ww, ww) + bias[None, None, :, :, :] + attn_mask[None, :, None, :, :]
    p = _softmax(logits.reshape(B * nH * nW, nh, ww, ww), axis=-1)
    o = (lambda x, *d: x.permute(*d))(torch.einsum("bhqk,bhkd->bhqd", p, v), 0, 2, 1, 3).reshape(B * nH * nW, ww, C) @ wo
    o = (lambda x, *d: x.permute(*d))(o.reshape(B, nH, nW, win, win, C), 0, 1, 3, 2, 4, 5).reshape(B, H, W, C)
    o = torch.roll(o, (shift, shift), (1, 2))
    return _layernorm(o, axis=-1)
```

```python
import re

VRE = re.compile(r'^v(\d+)$|^v\[(\d+):(\d+)\]$')
SRE = re.compile(r'^s(\d+)$|^s\[(\d+):(\d+)\]$')

def split_ops(s):
    out, depth, cur = [], 0, ''
    for ch in s:
        if ch == '[': depth += 1
        if ch == ']': depth -= 1
        if ch == ',' and depth == 0:
            out.append(cur.strip()); cur = ''
        else:
            cur += ch
    if cur.strip(): out.append(cur.strip())
    return out

def vset(op):
    op = op.strip()
    neg = op.lstrip('-')
    if neg.startswith('abs(') or neg.startswith('|'):
        neg = neg.replace('abs(', '').replace(')', '').replace('|', '')
    m = VRE.match(neg)
    if not m: return set()
    if m.group(1) is not None: return {int(m.group(1))}
    return set(range(int(m.group(2)), int(m.group(3)) + 1))

def sset(op):
    op = op.strip().lstrip('-')
    if op == 'vcc': return {'vcc'}
    if op == 'exec': return {'exec'}
    if op == 'm0': return {'m0'}
    if op == 'scc': return {'scc'}
    m = SRE.match(op)
    if not m: return set()
    if m.group(1) is not None: return {int(m.group(1))}
    return set(range(int(m.group(2)), int(m.group(3)) + 1))

TRANS = ('v_exp_f32', 'v_log_f32', 'v_rcp_f32', 'v_rsq_f32', 'v_sqrt_f32', 'v_sin_f32', 'v_cos_f32')

class Ins:
    __slots__ = ('text', 'mn', 'kind', 'vr', 'vw', 'sr', 'sw', 'dpp', 'passes', 'srcc', 'srcab', 'wide', 'tag', 'cmt', 'order_class', 'idx')
    def __init__(self, text, tag=None):
        self.text = text.strip()
        self.tag = tag
        self.idx = -1
        t = self.text.split(';')[0].strip()
        parts = t.split(None, 1)
        mn = parts[0]; self.mn = mn
        rest = parts[1] if len(parts) > 1 else ''
        ops = split_ops(rest)
        mods = ''
        if ops:
            last = ops[-1].split(None, 1)
            ops[-1] = last[0]
            mods = last[1] if len(last) > 1 else ''
        self.vr, self.vw, self.sr, self.sw = set(), set(), set(), set()
        self.dpp = False; self.passes = 0; self.srcc = set(); self.srcab = set(); self.wide = False
        def rd(o):
            self.vr |= vset(o); self.sr |= sset(o)
        def wr(o):
            self.vw |= vset(o); self.sw |= sset(o)
        if mn.startswith('v_mfma'):
            self.kind = 'mfma'
            self.passes = 4 if '16x16' in mn else 8
            wr(ops[0]); rd(ops[1]); rd(ops[2]); rd(ops[3])
            self.srcab = vset(ops[1]) | vset(ops[2]); self.srcc = vset(ops[3])
        elif mn.startswith('v_permlane') and 'swap' in mn:
            self.kind = 'permlane'
            wr(ops[0]); wr(ops[1]); rd(ops[0]); rd(ops[1])
        elif mn.startswith('v_'):
            base = mn.replace('_e32', '').replace('_e64', '').replace('_dpp', '')
            self.kind = 'trans' if base in TRANS else 'valu'
            self.dpp = ('row_' in mods or 'quad_perm' in mods or 'row_' in rest or 'quad_perm' in rest)
            wr(ops[0])
            for o in ops[1:]: rd(o)
            if base.startswith('v_fmac') or base.startswith('v_dot2c'): rd(ops[0])
            if self.dpp:
                m = re.search(r'bank_mask:(0x[0-9a-f]+)', rest); m2 = re.search(r'row_mask:(0x[0-9a-f]+)', rest)
                if (m and int(m.group(1), 16) != 0xf) or (m2 and int(m2.group(1), 16) != 0xf): rd(ops[0])
            if base == 'v_cndmask_b32' and len(ops) == 3: self.sr.add('vcc')
            if base in ('v_readfirstlane_b32', 'v_readlane_b32'): self.kind = 'readlane'
            self.sr.add('exec')
        elif mn.startswith('ds_read') or mn.startswith('ds_bpermute') or mn.startswith('ds_swizzle'):
            self.kind = 'dsr'
            wr(ops[0])
            for o in ops[1:]: rd(o)
            if 'd16' in mn: rd(ops[0])
        elif mn.startswith('ds_write'):
            self.kind = 'dsw'
            for o in ops: rd(o)
        elif mn.startswith('buffer_load') or mn.startswith('global_load'):
            if re.search(r'\blds\b', rest):
                self.kind = 'dma'
                for o in ops: rd(o)
                self.sr.add('m0')
            else:
                self.kind = 'vload'
                wr(ops[0])
                for o in ops[1:]: rd(o)
                if 'd16' in mn: rd(ops[0])
        elif mn.startswith('buffer_store') or mn.startswith('global_store') or mn.startswith('buffer_atomic') or mn.startswith('global_atomic'):
            self.kind = 'vstore'
            for o in ops: rd(o)
            self.wide = ('x3' in mn or 'x4' in mn)
            if self.wide:
                self.srcc = vset(ops[0]) if mn.startswith('buffer') else vset(ops[1])
        elif mn == 's_waitcnt': self.kind = 'waitcnt'
        elif mn == 's_barrier': self.kind = 'barrier'
        elif mn == 's_nop': self.kind = 'nop'
        elif mn.startswith('s_cbranch') or mn == 's_branch' or mn == 's_endpgm' or mn == 's_setprio':
            self.kind = 'branch' if mn != 's_setprio' else 'salu'
            if 'scc' in mn: self.sr.add('scc')
            if 'vcc' in mn: self.sr.add('vcc')
            if 'exec' in mn: self.sr.add('exec')
        elif mn.startswith('s_load') or mn.startswith('s_memtime') or mn.startswith('s_memrealtime'):
            self.kind = 'smem'
            wr(ops[0])
            for o in ops[1:]: rd(o)
        elif mn.startswith('s_'):
            self.kind = 'salu'
            if mn.startswith('s_cmp') or mn.startswith('s_bitcmp'):
                for o in ops: rd(o)
                self.sw.add('scc')
            else:
                wr(ops[0])
                for o in ops[1:]: rd(o)
                if mn.startswith(('s_add', 's_sub', 's_and', 's_or', 's_xor', 's_lshl', 's_lshr', 's_ashr', 's_min', 's_max', 's_andn2', 's_not', 's_bfe')):
                    self.sw.add('scc')
                if mn in ('s_addc_u32', 's_subb_u32', 's_cselect_b32', 's_cselect_b64'): self.sr.add('scc')
                if 'saveexec' in mn:
                    self.sw.add('exec'); self.sr.add('exec')
                if mn in ('s_addk_i32', 's_mulk_i32'): rd(ops[0])
        else:
            raise ValueError('unknown instruction: ' + text)
    def nopcount(self):
        if self.kind == 'nop':
            return int(self.text.split()[1], 0) + 1
        return 1
    def is_valu(self):
        return self.kind in ('valu', 'trans', 'permlane', 'readlane')

class Label:
    def __init__(self, name, clean=False):
        self.name = name; self.clean = clean; self.kind = 'label'
        self.text = name + ':'

class Raw:
    def __init__(self, text):
        self.text = text; self.kind = 'raw'

def need_states(p, c):
    n = 0
    pk, ck = p.kind, c.kind
    c_valu = c.is_valu()
    if pk == 'mfma':
        far = 8 if p.passes == 4 else 12
        ov = 6 if p.passes == 4 else 10
        D = p.vw
        if ck == 'mfma':
            if D & c.srcab: n = max(n, far)
            if D & c.srcc:
                if c.srcc == D and c.passes == p.passes: pass
                else: n = max(n, ov)
            if (D & c.vw) and not (c.srcc == D and c.vw == D and c.passes == p.passes):
                n = max(n, ov)
        elif c_valu:
            if D & (c.vr | c.vw): n = max(n, far)
            if p.srcc & c.vw: n = max(n, 3 if p.passes == 4 else 7)
        elif ck in ('dsr', 'dsw', 'vload', 'vstore', 'dma'):
            if D & (c.vr | c.vw): n = max(n, far)
            if ck in ('dsr', 'vload') and (p.srcc & c.vw): n = max(n, 3 if p.passes == 4 else 7)
    elif p.is_valu():
        W = p.vw
        if ck == 'mfma' and (W & c.vr): n = max(n, 2)
        if c_valu and c.dpp and (W & c.vr): n = max(n, 2)
        if ck == 'permlane' and (W & c.vr): n = max(n, 2)
        if ck == 'readlane' and (W & c.vr): n = max(n, 1)
        if pk == 'trans' and c_valu and c.kind != 'trans' and (W & c.vr): n = max(n, 1)
        if pk == 'trans' and ck in ('mfma',) and (W & c.vr): n = max(n, 2)
        SW = p.sw
        if SW:
            if (c_valu or ck == 'mfma') and (SW & c.sr): n = max(n, 2)
            if ck in ('vload', 'vstore', 'dma') and (SW & c.sr): n = max(n, 5)
            if ck in ('salu', 'branch', 'smem') and (SW & c.sr): n = max(n, 4)
            if 'exec' in SW and ck == 'mfma': n = max(n, 4)
            if 'exec' in SW and c_valu and c.dpp: n = max(n, 5)
    elif pk == 'vstore' and p.wide:
        if p.srcc & c.vw: n = max(n, 2)
    elif pk == 'salu':
        if 'm0' in p.sw and ck == 'dma': n = max(n, 1)
    return n

MAXLOOK = 16

def insert_hazard_nops(items, init_hist=None):
    out = []
    hist = list(init_hist or [])
    nn = 0
    for it in items:
        if not isinstance(it, Ins):
            out.append(it); continue
        need = 0
        dist = 0
        for p in reversed(hist):
            if dist >= MAXLOOK: break
            r = need_states(p, it)
            if r > dist: need = max(need, r - dist)
            dist += p.nopcount()
        while need > 0:
            k = min(need, 16)
            nop = Ins(f's_nop {k-1}')
            out.append(nop); hist.append(nop); need -= k; nn += k
        out.append(it); hist.append(it)
        if len(hist) > 40: hist = hist[-40:]
    return out, hist, nn

def flush_nops(hist):
    need = 0; dist = 0
    for p in reversed(hist):
        if dist >= MAXLOOK: break
        r = 0
        if p.kind == 'mfma': r = 8 if p.passes == 4 else 12
        elif p.is_valu(): r = 5 if p.sw - {'exec'} else 2
        elif p.kind == 'vstore' and p.wide: r = 2
        elif p.kind == 'salu' and 'm0' in p.sw: r = 1
        if r > dist: need = max(need, r - dist)
        dist += p.nopcount()
    return need

def insert_waits(items, lgkm_max=15, vm_auto=True):
    out = []
    lq = []
    vq = []
    smem_pending = set()
    for it in items:
        if isinstance(it, Label):
            out.append(it); continue
        if not isinstance(it, Ins):
            out.append(it); continue
        if it.kind == 'waitcnt':
            m = re.search(r'lgkmcnt\((\d+)\)', it.text)
            if m:
                n = int(m.group(1)); lq = lq[len(lq)-n:] if n < len(lq) and n > 0 else ([] if n == 0 else lq)
                if n == 0: smem_pending = set()
            m = re.search(r'vmcnt\((\d+)\)', it.text)
            if m:
                n = int(m.group(1)); vq = vq[len(vq)-n:] if n < len(vq) and n > 0 else ([] if n == 0 else vq)
            out.append(it); continue
        touch = it.vr | it.vw
        wl = None
        for i in range(len(lq) - 1, -1, -1):
            if lq[i] & touch:
                wl = len(lq) - 1 - i; break
        wv = None
        if vm_auto:
            for i in range(len(vq) - 1, -1, -1):
                if vq[i] & touch:
                    wv = len(vq) - 1 - i; break
        st = (it.sr | it.sw)
        if smem_pending & st:
            wl = 0
        if smem_pending and wl is not None: wl = 0
        if wl is not None or wv is not None:
            s = 's_waitcnt'
            if wv is not None:
                wv = min(wv, 63); s += f' vmcnt({wv})'; vq = vq[len(vq)-wv:] if wv > 0 else []
            if wl is not None:
                wl = min(wl, lgkm_max); s += f' lgkmcnt({wl})'; lq = lq[len(lq)-wl:] if wl > 0 else []
                if wl == 0: smem_pending = set()
            out.append(Ins(s))
        out.append(it)
        if it.kind == 'dsr': lq.append(set(it.vw))
        elif it.kind == 'dsw': lq.append(set())
        elif it.kind == 'smem': smem_pending |= it.sw;
        elif it.kind == 'vload': vq.append(set(it.vw))
        elif it.kind in ('vstore', 'dma'): vq.append(set())
    return out

ISSUE = {'valu': 4, 'trans': 8, 'permlane': 8, 'readlane': 4, 'mfma': 8, 'dsr': 4, 'dsw': 6, 'vload': 4, 'vstore': 4, 'dma': 4,
         'salu': 4, 'smem': 4, 'nop': 4, 'waitcnt': 4}

def latency(p, c, LDS_LAT=130):
    base = ISSUE.get(p.kind, 4)
    ns = need_states(p, c)
    lat = base + 4 * ns if ns else base
    if p.kind == 'mfma':
        pipe = 4 * p.passes
        if c.kind == 'mfma' and ns == 0 and (p.vw & c.srcc): lat = pipe
        elif ns: lat = max(lat, 4 * (ns + 1))
    if p.kind == 'dsr' and (p.vw & (c.vr | c.vw)): lat = LDS_LAT
    if p.kind == 'vload' and (p.vw & (c.vr | c.vw)): lat = 800
    return lat

def schedule(ins, LDS_LAT=130, keep_order_kinds=('vstore', 'dma', 'vload'), verbose=False, prio_boost=None):
    n = len(ins)
    preds = [[] for _ in range(n)]; succs = [[] for _ in range(n)]
    lastw = {}; readers = {}
    def key_sets(i):
        I = ins[i]
        R = {('v', r) for r in I.vr} | {('s', r) for r in I.sr if r != 'exec'}
        W = {('v', r) for r in I.vw} | {('s', r) for r in I.sw}
        return R, W
    last_vm = None; last_dsw = None; ds_since = []
    for i in range(n):
        R, W = key_sets(i)
        deps = set()
        for r in R:
            if r in lastw: deps.add(lastw[r])
        for w in W:
            if w in lastw: deps.add(lastw[w])
            for j in readers.get(w, ()): deps.add(j)
        I = ins[i]
        if I.kind in keep_order_kinds or (I.kind == 'salu' and 'm0' in I.sw):
            if last_vm is not None: deps.add(last_vm)
            last_vm = i
        deps.discard(i)
        for d in deps:
            preds[i].append(d); succs[d].append(i)
        for w in W:
            lastw[w] = i; readers[w] = []
        for r in R:
            if r not in W: readers.setdefault(r, []).append(i)
    lat = {}
    for i in range(n):
        for d in preds[i]:
            p, c = ins[d], ins[i]
            true_dep = bool((p.vw & (c.vr | c.vw)) or (p.sw & (c.sr | c.sw)))
            if true_dep or need_states(p, c): l = latency(p, c, LDS_LAT)
            else: l = ISSUE.get(p.kind, 4) if p.kind != 'mfma' else 8
            lat[(d, i)] = l
    prio = [0] * n
    for i in range(n - 1, -1, -1):
        best = 0
        for s in succs[i]: best = max(best, lat[(i, s)] + prio[s])
        prio[i] = best + (0 if succs[i] else ISSUE.get(ins[i].kind, 4))
        if prio_boost: prio[i] += prio_boost(ins[i])
    npred = [len(p) for p in preds]
    ready_t = [0] * n
    ready = [i for i in range(n) if npred[i] == 0]
    t = 0; pipe_free = 0
    order = []
    while ready:
        def est(i):
            e = max(t, ready_t[i])
            if ins[i].kind == 'mfma': e = max(e, pipe_free)
            return e
        emin = min(est(i) for i in ready)
        cands = [i for i in ready if est(i) <= emin]
        cands.sort(key=lambda i: (-prio[i], i))
        i = cands[0]
        st = est(i)
        order.append(i); ready.remove(i)
        I = ins[i]
        t = st + ISSUE.get(I.kind, 4)
        if I.kind == 'mfma': pipe_free = st + 4 * I.passes
        for s in succs[i]:
            ready_t[s] = max(ready_t[s], st + lat[(i, s)])
            npred[s] -= 1
            if npred[s] == 0: ready.append(s)
    assert len(order) == n
    if verbose: print(f'; scheduled {n} instrs, est cycles {t}')
    return [ins[i] for i in order], t
```

```python
import sys, struct, math
from asmdsl import *

NAME = "standalone__window_attn_swin_v2__vision_kernel"
NWG = 512
NWIN = 5329
ROWB = 511 * 192
TOTAL = 511 * 511 * 192
XB0, XSZ = 0, 12288
OB0, OSZ = 24576, 13312
WO = 51200
TAB = 69632
LDS_BYTES = 73728
STG = 12288
RS = 208
LOG2E = 1.4426950408889634
TAU_THR = 45.0

def f2u(x): return struct.unpack('<I', struct.pack('<f', x))[0]
def hx(x): return f'0x{x & 0xffffffff:08x}'
def fl(x): return hx(f2u(x))

WQ, WK, WV = 0, 24, 48
B00, B10, B01, B11 = 72, 88, 98, 114
BIAS = {(0, 0): B00, (1, 0): B10, (0, 1): B01, (1, 1): B11}
XR0, XR1, OW, OR, WOA = 124, 125, 126, 127, 128
DM = [129, 130, 131]
ST = [132, 133, 134, 135]
ONA, ONB = 136, 138
CQ = 140
T0 = 141
PZ = 142
Q0, Q1, K0, K1, V0, V1 = 144, 150, 156, 162, 168, 176
QOP = [Q0, Q1]; KOP = [K0, K1]
X = 182
A, B, C = 206, 222, 238
T1, T2 = 254, 255
def v(i): return f'v{i}'
def vt(i, n): return f'v[{i}:{i+n-1}]'

SX, SO = 4, 8
S_W, S_WO, S_RI, S_RC = 12, 16, 20, 24
sH = 28
sPERM = 29
sI = 30
sCNT = 31
sBN, sTN, sBC, sTC, sBP, sTP, sTPP = 32, 33, 34, 35, 36, 37, 38
sDX, sDO = 39, 40
sXM0 = 41
sEPSH = 42
sDMAOFF, sSTOFF = 43, 44
sMODE = 45
sT0, sT1, sT2, sT3 = 46, 47, 48, 49
sN = 50

class P:
    def __init__(self): self.items = []
    def __call__(self, text, tag=None):
        for line in text.strip().split('\n'):
            line = line.strip()
            if not line or line.startswith(';'): continue
            self.items.append(Ins(line, tag))
    def label(self, name): self.items.append(Label(name))
    def raw(self, t): self.items.append(Raw(t))
    def extend(self, items): self.items.extend(items)

def win_scalars(p, sn, sb, st):
    p(f'''
    s_mul_hi_u32 s{sT0}, s{sn}, 58835169
    s_mul_i32 s{sT1}, s{sT0}, 73
    s_sub_u32 s{sT1}, s{sn}, s{sT1}
    s_mul_i32 s{sb}, s{sT0}, {7*ROWB}
    s_mul_i32 s{st}, s{sT1}, 1344
    s_add_u32 s{sb}, s{sb}, s{st}
    s_add_u32 s{sb}, s{sb}, {(3*511+3)*192}
    s_cmp_eq_u32 s{sT0}, 72
    s_cselect_b32 s{st}, 2, 0
    s_cmp_eq_u32 s{sT1}, 72
    s_cselect_b32 s{sT0}, 1, 0
    s_or_b32 s{st}, s{st}, s{sT0}
    ''')

def win_index(p, si, sn):
    p(f'''
    s_lshl_b32 s{sn}, s{si}, 9
    s_cmp_eq_u32 s{si}, 10
    s_cselect_b32 s{sT0}, s2, s{sPERM}
    s_add_u32 s{sn}, s{sn}, s{sT0}
    ''')

def lane_id(p, d):
    p(f'''
    v_mbcnt_lo_u32_b32 {v(d)}, -1, 0
    v_mbcnt_hi_u32_b32 {v(d)}, -1, {v(d)}
    ''')

def tok_rel(p, t, dst, ti, tj, sbase=None, stype=None, tmp=None):
    p(f'''
    v_mul_u32_u24 {v(ti)}, 37, {v(t)}
    v_lshrrev_b32 {v(ti)}, 8, {v(ti)}
    v_mul_u32_u24 {v(tj)}, 7, {v(ti)}
    v_sub_u32 {v(tj)}, {v(t)}, {v(tj)}
    v_mul_u32_u24 {v(dst)}, {ROWB}, {v(ti)}
    v_mul_u32_u24 {v(tmp)}, 192, {v(tj)}
    v_add_u32 {v(dst)}, {v(dst)}, {v(tmp)}
    ''')
    if sbase is not None:
        p(f'''
        v_add_u32 {v(dst)}, s{sbase}, {v(dst)}
        v_mov_b32 {v(tmp)}, s{sT2}
        v_cmp_le_u32 vcc, 4, {v(ti)}
        v_cndmask_b32_e64 {v(tmp)}, 0, {v(tmp)}, vcc
        v_sub_u32 {v(dst)}, {v(dst)}, {v(tmp)}
        v_mov_b32 {v(tmp)}, s{sT3}
        v_cmp_le_u32 vcc, 4, {v(tj)}
        v_cndmask_b32_e64 {v(tmp)}, 0, {v(tmp)}, vcc
        v_sub_u32 {v(dst)}, {v(dst)}, {v(tmp)}
        ''')

def wrap_consts(p, stype):
    p(f'''
    s_bitcmp1_b32 s{stype}, 1
    s_cselect_b32 s{sT2}, {TOTAL}, 0
    s_bitcmp1_b32 s{stype}, 0
    s_cselect_b32 s{sT3}, {ROWB}, 0
    ''')

def dma_offsets(p, tmps, sbase=None, stype=None):
    ln, pp, t, c, ti, tj, tmp = tmps[:7]
    lane_id(p, ln)
    p(f's_lshl_b32 s{sT0}, s{sH}, 6')
    p(f'v_add_u32 {v(ln)}, s{sT0}, {v(ln)}')
    if sbase is not None: wrap_consts(p, stype)
    for k in range(3):
        p(f'''
        v_add_u32 {v(pp)}, {256*k}, {v(ln)}
        v_mul_u32_u24 {v(t)}, 5042, {v(pp)}
        v_lshrrev_b32 {v(t)}, 16, {v(t)}
        v_mul_u32_u24 {v(c)}, 13, {v(t)}
        v_sub_u32 {v(c)}, {v(pp)}, {v(c)}
        v_min_u32 {v(c)}, 11, {v(c)}
        v_min_u32 {v(t)}, 48, {v(t)}
        ''')
        tok_rel(p, t, DM[k], ti, tj, sbase, stype, tmp)
        p(f'''
        v_lshlrev_b32 {v(c)}, 4, {v(c)}
        v_add_u32 {v(DM[k])}, {v(DM[k])}, {v(c)}
        ''')

def st_offsets(p, tmps, sbase=None, stype=None):
    ln, g4, t, c, ti, tj, tmp = tmps[:7]
    lane_id(p, ln)
    p(f'''
    v_lshrrev_b32 {v(g4)}, 4, {v(ln)}
    v_lshlrev_b32 {v(g4)}, 2, {v(g4)}
    s_lshl_b32 s{sT0}, s{sH}, 4
    v_add_u32 {v(g4)}, s{sT0}, {v(g4)}
    v_and_b32 {v(c)}, 15, {v(ln)}
    v_mul_u32_u24 {v(c)}, 12, {v(c)}
    ''')
    if sbase is not None: wrap_consts(p, stype)
    for r in range(4):
        p(f'v_add_u32 {v(t)}, {r}, {v(g4)}')
        tok_rel(p, t, ST[r], ti, tj, sbase, stype, tmp)
        p(f'''
        v_add_u32 {v(ST[r])}, {v(ST[r])}, {v(c)}
        v_mov_b32 {v(tmp)}, 0x80000000
        v_cmp_lt_u32 vcc, 48, {v(t)}
        v_cndmask_b32 {v(ST[r])}, {v(ST[r])}, {v(tmp)}, vcc
        ''')

def dma_issue(p):
    for k in range(3):
        if k == 0: p(f's_mov_b32 m0, s{sXM0}')
        else: p(f's_add_u32 m0, s{sXM0}, {4096*k}')
        p(f'buffer_load_dwordx4 {v(DM[k])}, s[{SX}:{SX+3}], s{sDMAOFF} offen lds')

def prologue(p):
    TID = 255; LN = 254
    p(f'''
    s_cmp_ge_u32 s2, {NWG}
    s_cbranch_scc1 L_END
    s_load_dwordx16 s[52:67], s[0:1], 0
    s_load_dwordx4 s[68:71], s[0:1], 64
    v_mov_b32 {v(TID)}, v0
    v_and_b32 {v(LN)}, 63, v0
    v_lshrrev_b32 v1, 6, v0
    s_nop 0
    v_readfirstlane_b32 s{sH}, v1
    s_and_b32 s{sT0}, s2, 7
    s_lshl_b32 s{sT0}, s{sT0}, 6
    s_lshr_b32 s{sPERM}, s2, 3
    s_add_u32 s{sPERM}, s{sPERM}, s{sT0}
    s_cmp_lt_u32 s2, {NWIN - 10*NWG}
    s_cselect_b32 s{sCNT}, 11, 10
    s_mov_b32 s{sI}, 0
    s_mov_b32 s{sEPSH}, {fl(0.5e-12)}
    s_waitcnt lgkmcnt(0)
    ''')
    def srd(d, ptr, nbytes):
        p(f'''
        s_mov_b32 s{d}, s{ptr}
        s_and_b32 s{d+1}, s{ptr+1}, 0xffff
        s_mov_b32 s{d+2}, {nbytes}
        s_mov_b32 s{d+3}, 0x00020000
        ''')
    srd(SX, 52, TOTAL); srd(SO, 70, TOTAL); srd(S_W, 54, 96*288*2); srd(S_WO, 56, 96*96*2)
    srd(S_RI, 66, 49*49*4); srd(S_RC, 64, 169*2*2)
    p(f'''
    s_load_dwordx2 s[72:73], s[58:59], 0
    s_load_dwordx16 s[76:91], s[60:61], 0
    s_mov_b32 s74, s62
    s_mov_b32 s75, s63
    ''')
    p(f's_mov_b32 s{sN}, s{sPERM}')
    win_scalars(p, sN, sBC, sTC)
    p(f'''
    s_mov_b32 s{sTP}, 0
    s_mov_b32 s{sTPP}, 0
    s_mov_b32 s{sBP}, 0
    s_cmp_lg_u32 s{sTC}, 0
    s_cselect_b32 s{sT1}, s{sBC}, 0
    s_cselect_b32 s{sDMAOFF}, 0, s{sBC}
    s_mov_b32 s{sBN}, s{sT1}
    ''')
    dma_offsets(p, list(range(200, 210)), sbase=sBN, stype=sTC)
    p(f'''
    s_lshl_b32 s{sXM0}, s{sH}, 10
    ''')
    dma_issue(p)
    p(f'''
    v_lshlrev_b32 v200, 4, {v(TID)}
    s_lshl_b32 s{sT0}, s{sH}, 10
    s_add_u32 s{sT0}, s{sT0}, {STG}
    s_mov_b32 s{sT1}, 0
    ''')
    for k in range(14):
        p(f'''
        s_mov_b32 m0, s{sT0}
        s_nop 0
        buffer_load_dwordx4 v200, s[{S_W}:{S_W+3}], s{sT1} offen lds
        s_add_u32 s{sT0}, s{sT0}, 4096
        s_add_u32 s{sT1}, s{sT1}, 4096
        ''')
    n32, hf = 201, 202
    p(f'''
    v_and_b32 {v(n32)}, 31, {v(LN)}
    v_lshrrev_b32 {v(hf)}, 5, {v(LN)}
    ''')
    for qt in range(2):
        qa, qb = 203 + 2*qt, 204 + 2*qt
        p(f'''
        v_add_u32 {v(qa)}, {32*qt}, {v(n32)}
        v_min_u32 {v(qa)}, 48, {v(qa)}
        v_mul_u32_u24 {v(qa)}, 196, {v(qa)}
        v_lshlrev_b32 {v(qb)}, 4, {v(hf)}
        v_add_u32 {v(qb)}, {v(qa)}, {v(qb)}
        ''')
        for a in range(4):
            p(f'buffer_load_dwordx4 {vt(BIAS[(0,qt)]+4*a,4)}, {v(qb)}, s[{S_RI}:{S_RI+3}], 0 offen offset:{32*a}')
        for a in range(2):
            p(f'buffer_load_dwordx4 {vt(BIAS[(1,qt)]+4*a,4)}, {v(qb)}, s[{S_RI}:{S_RI+3}], 0 offen offset:{128+32*a}')
        p(f'buffer_load_dword {v(BIAS[(1,qt)]+8)}, {v(qa)}, s[{S_RI}:{S_RI+3}], 0 offen offset:192')
    p(f'''
    v_lshlrev_b32 v207, 2, {v(TID)}
    buffer_load_dword v208, v207, s[{S_RC}:{S_RC+3}], 0 offen
    ''')
    p(f'''
    v_lshrrev_b32 v209, 1, {v(TID)}
    v_mul_u32_u24 v210, 192, v209
    v_and_b32 v211, 1, {v(TID)}
    v_mul_u32_u24 v212, 96, v211
    v_add_u32 v210, v210, v212
    ''')
    for k in range(6):
        p(f'buffer_load_dwordx4 {vt(144+4*k,4)}, v210, s[{S_WO}:{S_WO+3}], 0 offen offset:{16*k}')
    p(f'''
    s_waitcnt lgkmcnt(0)
    s_load_dwordx16 s[52:67], s[74:75], 0
    ''')
    for h in range(4):
        src = 72 + (h >> 1)
        if h & 1: p(f's_and_b32 s{sT0}, s{src}, 0xffff0000')
        else: p(f's_lshl_b32 s{sT0}, s{src}, 16')
        p(f'''
        v_mov_b32 {v(216+h)}, s{sT0}
        v_min_f32 {v(216+h)}, {fl(4.59375)}, {v(216+h)}
        v_max_f32 {v(216+h)}, {fl(-100.0)}, {v(216+h)}
        v_mul_f32 {v(216+h)}, {fl(LOG2E)}, {v(216+h)}
        v_exp_f32 {v(216+h)}, {v(216+h)}
        s_nop 0
        v_cvt_pk_bf16_f32 {v(216+h)}, 0, {v(216+h)}
        v_add_f32 {v(220+h)}, {fl(16.0)}, {v(216+h)}
        v_mul_f32 {v(220+h)}, {fl(LOG2E)}, {v(220+h)}
        v_add_f32 {v(220+h)}, {fl(-64.0)}, {v(220+h)}
        v_cmp_lt_f32 vcc, {fl(TAU_THR)}, {v(216+h)}
        v_mov_b32 v224, 0
        v_cndmask_b32 {v(220+h)}, {v(220+h)}, v224, vcc
        ''')
    for h in range(4):
        p(f'v_readfirstlane_b32 s{92+h}, {v(216+h)}')
    p(f'''
    s_nop 3
    s_mov_b32 s96, s92
    s_cmp_eq_u32 s{sH}, 1
    s_cselect_b32 s96, s93, s96
    s_cmp_eq_u32 s{sH}, 2
    s_cselect_b32 s96, s94, s96
    s_cmp_eq_u32 s{sH}, 3
    s_cselect_b32 s96, s95, s96
    v_mov_b32 v224, s96
    v_cmp_lt_f32 vcc, {fl(TAU_THR)}, v224
    v_mul_f32 v224, {fl(LOG2E)}, v224
    v_mov_b32 {v(CQ)}, 1.0
    v_cmp_gt_u32 s[98:99], 32, {v(LN)}
    s_nop 1
    v_cndmask_b32_e64 {v(CQ)}, {v(CQ)}, v224, s[98:99]
    s_cmp_lg_u64 vcc, 0
    s_cselect_b32 s{sMODE}, 1, 0
    ''')
    c0, c1, hh, acc = 225, 226, 227, 228
    p(f'''
    v_lshlrev_b32 {v(c0)}, 16, v208
    v_and_b32 {v(c1)}, 0xffff0000, v208
    ''')
    for h in range(4): p(f'v_mov_b32 {v(acc+h)}, 0')
    def unp(sreg, hi, dst):
        if hi: p(f's_and_b32 s{dst}, s{sreg}, 0xffff0000')
        else: p(f's_lshl_b32 s{dst}, s{sreg}, 16')
    for j in range(16):
        if j == 0: p('s_waitcnt lgkmcnt(0)')
        if j == 8:
            p(f'''
            s_load_dwordx16 s[52:67], s[74:75], 64
            s_waitcnt lgkmcnt(0)
            ''')
        unp(76 + (j >> 1), j & 1, sT0); unp(84 + (j >> 1), j & 1, sT1)
        p(f'''
        v_mul_f32 {v(hh)}, s{sT0}, {v(c0)}
        v_fma_f32 {v(hh)}, {v(c1)}, s{sT1}, {v(hh)}
        v_cvt_pk_bf16_f32 {v(hh)}, 0, {v(hh)}
        v_max_f32 {v(hh)}, 0, {v(hh)}
        ''')
        jj = j % 8
        for h in range(4):
            unp(52 + 2*jj + (h >> 1), h & 1, sT2)
            p(f'v_fma_f32 {v(acc+h)}, {v(hh)}, s{sT2}, {v(acc+h)}')
    for h in range(4):
        a = acc + h
        p(f'''
        v_cvt_pk_bf16_f32 {v(a)}, 0, {v(a)}
        v_mul_f32 {v(a)}, {fl(-LOG2E)}, {v(a)}
        v_exp_f32 {v(a)}, {v(a)}
        s_nop 0
        v_add_f32 {v(a)}, 1.0, {v(a)}
        v_rcp_f32 {v(a)}, {v(a)}
        s_nop 0
        v_cvt_pk_bf16_f32 {v(a)}, 0, {v(a)}
        v_mul_f32 {v(a)}, {fl(16.0*LOG2E)}, {v(a)}
        v_sub_f32 {v(a)}, {v(a)}, {v(220+h)}
        v_mov_b32 v232, {fl(-1e30)}
        v_cmp_eq_u32 vcc, 169, {v(TID)}
        v_cndmask_b32 {v(a)}, {v(a)}, v232, vcc
        ''')
    p(f'''
    v_lshlrev_b32 v232, 4, {v(TID)}
    v_add_u32 v232, {TAB}, v232
    ds_write_b128 v232, {vt(acc,4)}
    ''')
    for k in range(24):
        p(f'''
        v_lshlrev_b32 {v(2*k)}, 16, {v(144+k)}
        v_and_b32 {v(2*k+1)}, 0xffff0000, {v(144+k)}
        ''')
    p(f'v_add_f32 v233, v0, v1')
    for k in range(2, 48): p(f'v_add_f32 v233, v233, {v(k)}')
    p(f'''
    s_nop 1
    v_add_f32_dpp v234, v233, v233 quad_perm:[1,0,3,2] row_mask:0xf bank_mask:0xf
    v_mul_f32 v234, {fl(1.0/96.0)}, v234
    ''')
    for k in range(48): p(f'v_sub_f32 {v(k)}, {v(k)}, v234')
    for k in range(24): p(f'v_cvt_pk_bf16_f32 {v(144+k)}, {v(2*k)}, {v(2*k+1)}')
    p(f'''
    v_mul_u32_u24 v235, 171, v209
    v_lshrrev_b32 v235, 12, v235
    v_mul_u32_u24 v236, 24, v235
    v_sub_u32 v237, v209, v236
    v_bfe_u32 v238, v237, 2, 1
    v_mul_u32_u24 v238, 12, v238
    v_and_b32 v239, 3, v237
    v_lshrrev_b32 v240, 3, v237
    v_lshlrev_b32 v240, 2, v240
    v_add_u32 v239, v239, v240
    v_add3_u32 v236, v236, v238, v239
    v_lshrrev_b32 v237, 5, v236
    v_mul_u32_u24 v237, 6144, v237
    v_bfe_u32 v238, v236, 3, 2
    v_lshlrev_b32 v238, 8, v238
    v_and_b32 v239, 7, v236
    v_lshlrev_b32 v239, 1, v239
    v_add3_u32 v237, v237, v238, v239
    v_lshlrev_b32 v238, 7, v211
    v_add_u32 v237, v237, v238
    ''')
    WOSC = 237
    p('''
    s_waitcnt vmcnt(0) lgkmcnt(0)
    s_barrier
    ''')
    p(f'''
    v_bfe_u32 v240, {v(LN)}, 2, 2
    v_lshlrev_b32 v241, 3, {v(hf)}
    v_add_u32 v240, v240, v241
    v_mul_u32_u24 v240, 576, v240
    v_and_b32 v241, 3, {v(LN)}
    v_bfe_u32 v242, {v(LN)}, 4, 1
    s_mul_i32 s{sT0}, s{sH}, 48
    s_add_u32 s{sT0}, s{sT0}, {STG}
    v_add_u32 v240, s{sT0}, v240
    v_and_b32 v243, 1, v241
    v_mul_u32_u24 v243, 24, v243
    v_lshrrev_b32 v244, 1, v241
    v_lshlrev_b32 v245, 1, v242
    v_add_u32 v244, v244, v245
    v_lshlrev_b32 v244, 3, v244
    v_add3_u32 v246, v240, v243, v244
    v_lshlrev_b32 v243, 5, v242
    v_lshlrev_b32 v244, 3, v241
    v_add3_u32 v247, v240, v243, v244
    ''')
    for s in range(6):
        for u in range(2):
            off = (16*s + 4*u) * 576
            p(f'ds_read_b64_tr_b16 {vt(WQ+4*s+2*u,2)}, v246 offset:{off}')
            p(f'ds_read_b64_tr_b16 {vt(WK+4*s+2*u,2)}, v246 offset:{off+192}')
            p(f'ds_read_b64_tr_b16 {vt(WV+4*s+2*u,2)}, v247 offset:{off+384}')
    p(f'''
    s_lshl_b32 s{sT0}, s{sH}, 2
    s_add_u32 s{sT0}, s{sT0}, {TAB}
    v_mov_b32 v248, s{sT0}
    v_mov_b32 v249, 169
    v_cmp_lt_u32 vcc, 31, {v(LN)}
    ''')
    for qt in range(2):
        r = BIAS[(1, qt)] + 8
        p(f'v_cndmask_b32 {v(r)}, {v(r)}, v249, vcc')
    regs = []
    for qt in range(2):
        regs += list(range(BIAS[(0,qt)], BIAS[(0,qt)]+16)) + list(range(BIAS[(1,qt)], BIAS[(1,qt)]+9))
    for r in regs: p(f'v_lshl_add_u32 {v(r)}, {v(r)}, 4, v248')
    for r in regs: p(f'ds_read_b32 {v(r)}, {v(r)}')
    p(f'v_mov_b32 {v(B10+9)}, 0')
    p(f'v_mov_b32 {v(B11+9)}, 0')
    p(f'''
    v_mov_b32 v249, 0
    v_cmp_gt_u32 vcc, 24, {v(n32)}
    v_cndmask_b32_e64 v248, 0, -1, vcc
    ''')
    for r in range(72): p(f'v_and_b32 {v(r)}, v248, {v(r)}')
    p(f'''
    v_mov_b32 {v(ONA+1)}, 0
    v_mov_b32 {v(ONB+1)}, 0
    v_mov_b32 {v(PZ+1)}, 0
    v_mov_b32 v249, 0x3f80
    v_cmp_gt_u32 vcc, 32, {v(LN)}
    v_cndmask_b32_e64 {v(ONA)}, 0, v249, vcc
    v_cmp_le_u32 vcc, 24, {v(n32)}
    v_cndmask_b32_e64 {v(ONB)}, 0, {v(ONA)}, vcc
    ''')
    p(f'''
    v_mul_u32_u24 {v(XR0)}, {RS}, {v(n32)}
    v_lshlrev_b32 v249, 4, {v(hf)}
    v_add_u32 {v(XR0)}, {v(XR0)}, v249
    v_add_u32 {v(XR1)}, 32, {v(n32)}
    v_min_u32 {v(XR1)}, 48, {v(XR1)}
    v_mul_u32_u24 {v(XR1)}, {RS}, {v(XR1)}
    v_add_u32 {v(XR1)}, {v(XR1)}, v249
    v_mul_u32_u24 {v(OW)}, {RS}, {v(n32)}
    v_mul_u32_u24 v249, 24, {v(hf)}
    s_mul_i32 s{sT0}, s{sH}, 48
    s_add_u32 s{sT0}, s{sT0}, {OB0}
    v_add3_u32 {v(OW)}, {v(OW)}, v249, s{sT0}
    v_and_b32 v249, 15, {v(LN)}
    s_lshl_b32 s{sT0}, s{sH}, 4
    v_add_u32 v249, s{sT0}, v249
    v_mul_u32_u24 {v(OR)}, {RS}, v249
    v_lshrrev_b32 v249, 4, {v(LN)}
    v_lshlrev_b32 v249, 4, v249
    v_add_u32 {v(OR)}, {v(OR)}, v249
    v_add_u32 {v(OR)}, {OB0 + OSZ}, {v(OR)}
    v_lshlrev_b32 {v(WOA)}, 4, {v(LN)}
    v_add_u32 {v(WOA)}, {WO}, {v(WOA)}
    s_mov_b32 s{sDX}, {XSZ}
    s_mov_b32 s{sDO}, {OSZ}
    ''')
    st_offsets(p, list(range(200, 210)))
    p('''
    s_waitcnt lgkmcnt(0)
    s_barrier
    ''')
    p(f'''
    s_cmp_ge_u32 s{sH}, 3
    s_cbranch_scc1 L_WO_DONE
    ''')
    for e in range(48):
        off = WO + (e % 6) * 1024 + (e // 6) * 16
        if e % 2 == 0: p(f'ds_write_b16 {v(WOSC)}, {v(144+e//2)} offset:{off}')
        else: p(f'ds_write_b16_d16_hi {v(WOSC)}, {v(144+e//2)} offset:{off}')
    p.label('L_WO_DONE')

def mf32(d, a, b, c): return f'v_mfma_f32_32x32x16_bf16 {vt(d,16)}, {vt(a,4)}, {vt(b,4)}, ' + (vt(c,16) if c is not None else '0')
def mf32k8(d, a, b, c): return f'v_mfma_f32_32x32x8_bf16 {vt(d,16)}, {vt(a,2)}, {vt(b,2)}, ' + (vt(c,16) if c is not None else '0')
def mf16(d, a, b, c): return f'v_mfma_f32_16x16x32_bf16 {vt(d,4)}, {vt(a,4)}, {vt(b,4)}, ' + (vt(c,4) if c is not None else '0')

def proj_part(p):
    PACC = Q0
    OF = C
    WF = B
    SS = V0
    tt, uu, ww = 172, 173, 174
    for s in range(3): p(f'ds_read_b128 {vt(OF+4*s,4)}, {v(OR)} offset:{64*s}')
    k = 0
    for tau in range(6):
        for s in range(3):
            w = WF + 4 * (k % 4); k += 1
            p(f'ds_read_b128 {vt(w,4)}, {v(WOA)} offset:{(s*6+tau)*1024}')
            p(mf16(PACC+4*tau, OF+4*s, w, None if s == 0 else PACC+4*tau))
    for r in range(4):
        p(f'v_mul_f32 {v(SS+r)}, {v(PACC+r)}, {v(PACC+r)}')
        for tau in range(1, 6): p(f'v_fmac_f32 {v(SS+r)}, {v(PACC+4*tau+r)}, {v(PACC+4*tau+r)}')
    p(f'''
    v_add_f32_dpp {v(tt)}, {v(SS)}, {v(SS)} row_ror:8 row_mask:0xf bank_mask:0x3
    v_add_f32_dpp {v(tt)}, {v(SS+1)}, {v(SS+1)} row_ror:8 row_mask:0xf bank_mask:0xc
    v_add_f32_dpp {v(uu)}, {v(SS+2)}, {v(SS+2)} row_ror:8 row_mask:0xf bank_mask:0x3
    v_add_f32_dpp {v(uu)}, {v(SS+3)}, {v(SS+3)} row_ror:8 row_mask:0xf bank_mask:0xc
    v_add_f32_dpp {v(ww)}, {v(tt)}, {v(tt)} row_half_mirror row_mask:0xf bank_mask:0x5
    v_add_f32_dpp {v(ww)}, {v(uu)}, {v(uu)} row_half_mirror row_mask:0xf bank_mask:0xa
    v_add_f32_dpp {v(tt)}, {v(ww)}, {v(ww)} quad_perm:[1,0,3,2] row_mask:0xf bank_mask:0xf
    v_add_f32_dpp {v(ww)}, {v(tt)}, {v(tt)} quad_perm:[2,3,0,1] row_mask:0xf bank_mask:0xf
    v_add_f32 {v(ww)}, {fl(96e-5)}, {v(ww)}
    v_rsq_f32 {v(ww)}, {v(ww)}
    v_mul_f32 {v(ww)}, {fl(math.sqrt(96.0))}, {v(ww)}
    ''')
    for r, ln in enumerate((0, 8, 4, 12)):
        p(f'v_mov_b32_dpp {v(SS+r)}, {v(ww)} row_newbcast:{ln} row_mask:0xf bank_mask:0xf')
    for r in range(4):
        for tau in range(6): p(f'v_mul_f32 {v(PACC+4*tau+r)}, {v(PACC+4*tau+r)}, {v(SS+r)}')
        o = 176 if r % 2 == 0 else 172
        for i in range(3): p(f'v_cvt_pk_bf16_f32 {v(o+i)}, {v(PACC+8*i+r)}, {v(PACC+8*i+4+r)}')
        p(f'buffer_store_dwordx3 {vt(o,3)}, {v(ST[r])}, s[{SO}:{SO+3}], s{sSTOFF} offen')

def qkv_part(p):
    for T in range(2):
        xr = XR0 if T == 0 else XR1
        for s in range(6): p(f'ds_read_b128 {vt(X+4*s,4)}, {v(xr)} offset:{32*s}')
        for s in range(6): p(mf32(A, WQ+4*s, X+4*s, None if s == 0 else A))
        for s in range(6): p(mf32(B, WK+4*s, X+4*s, None if s == 0 else B))
        p(mf32k8(C, ONA, ONB, None))
        for s in range(6): p(mf32(C, X+4*s, WV+4*s, C))
        p(f'v_fma_f32 {v(T1)}, {v(A)}, {v(A)}, s{sEPSH}')
        for r in range(1, 12): p(f'v_fmac_f32 {v(T1)}, {v(A+r)}, {v(A+r)}')
        p(f'v_fma_f32 {v(T2)}, {v(B)}, {v(B)}, s{sEPSH}')
        for r in range(1, 12): p(f'v_fmac_f32 {v(T2)}, {v(B+r)}, {v(B+r)}')
        p(f'''
        v_permlane32_swap_b32 {v(T1)}, {v(T2)}
        v_add_f32 {v(T1)}, {v(T1)}, {v(T2)}
        v_rsq_f32 {v(T1)}, {v(T1)}
        v_mul_f32 {v(T1)}, {v(T1)}, {v(CQ)}
        v_mov_b32 {v(T2)}, {v(T1)}
        v_permlane32_swap_b32 {v(T1)}, {v(T2)}
        ''')
        for r in range(12): p(f'v_mul_f32 {v(A+r)}, {v(A+r)}, {v(T1)}')
        for i in range(6): p(f'v_cvt_pk_bf16_f32 {v(QOP[T]+i)}, {v(A+2*i)}, {v(A+2*i+1)}')
        for r in range(12): p(f'v_mul_f32 {v(B+r)}, {v(B+r)}, {v(T2)}')
        for i in range(6): p(f'v_cvt_pk_bf16_f32 {v(KOP[T]+i)}, {v(B+2*i)}, {v(B+2*i+1)}')
        nv = 8 if T == 0 else 6
        vop = V0 if T == 0 else V1
        for i in range(nv): p(f'v_cvt_pk_bf16_f32 {v(vop+i)}, {v(C+2*i)}, {v(C+2*i+1)}')

DREG = {(0, 0): A, (1, 0): B, (0, 1): C, (1, 1): X}
def s_part(p, masked=False):
    for qt in range(2):
        for kt in range(2):
            d = DREG[(kt, qt)]
            p(mf32(d, KOP[kt], QOP[qt], d if masked else BIAS[(kt, qt)]))
            p(mf32k8(d, KOP[kt]+4, QOP[qt]+4, d))

def mask_block(p):
    KF = [X+16, X+18]; QF = [X+20, X+22]
    ln, n32, cc, t, ti, tj, a, b, km, ff, one = A, A+1, A+2, A+3, A+4, A+5, A+6, A+7, A+8, A+9, A+10
    lane_id(p, ln)
    p(f'''
    v_and_b32 {v(n32)}, 31, {v(ln)}
    v_mov_b32 {v(cc)}, 0xC310C310
    v_mov_b32 {v(t)}, 0xBE8ABE8A
    v_cmp_lt_u32 vcc, 31, {v(ln)}
    v_cndmask_b32 {v(cc)}, {v(cc)}, {v(t)}, vcc
    v_mov_b32 {v(ff)}, 0xffff
    v_mov_b32 {v(one)}, 0x3f803f80
    s_lshr_b32 s{sT0}, s{sTC}, 1
    s_and_b32 s{sT1}, s{sTC}, 1
    ''')
    for T in range(2):
        p(f'''
        v_add_u32 {v(t)}, {32*T}, {v(n32)}
        v_min_u32 {v(t)}, 48, {v(t)}
        v_mul_u32_u24 {v(ti)}, 37, {v(t)}
        v_lshrrev_b32 {v(ti)}, 8, {v(ti)}
        v_mul_u32_u24 {v(tj)}, 7, {v(ti)}
        v_sub_u32 {v(tj)}, {v(t)}, {v(tj)}
        v_cmp_le_u32 vcc, 4, {v(ti)}
        v_cndmask_b32_e64 {v(a)}, 0, 1, vcc
        v_and_b32 {v(a)}, s{sT0}, {v(a)}
        v_cmp_le_u32 vcc, 4, {v(tj)}
        v_cndmask_b32_e64 {v(b)}, 0, 16, vcc
        v_mul_u32_u24 {v(b)}, s{sT1}, {v(b)}
        v_lshlrev_b32 {v(km)}, {v(b)}, {v(ff)}
        v_cmp_eq_u32 vcc, 0, {v(a)}
        v_cndmask_b32_e64 {v(a)}, 0, {v(km)}, vcc
        v_cndmask_b32_e64 {v(b)}, {v(km)}, 0, vcc
        v_and_b32 {v(KF[T])}, {v(one)}, {v(a)}
        v_and_b32 {v(KF[T]+1)}, {v(one)}, {v(b)}
        v_bfi_b32 {v(QF[T])}, {v(a)}, 0, {v(cc)}
        v_bfi_b32 {v(QF[T]+1)}, {v(b)}, 0, {v(cc)}
        ''')
    for qt in range(2):
        for kt in range(2):
            p(mf32k8(DREG[(kt, qt)], KF[kt], QF[qt], BIAS[(kt, qt)]))

def softmax_part(p, slowmax):
    POPS = {0: [X+16, X+20, B+12], 1: [B, B+4, X+12]}
    OACC = {0: A, 1: C}
    OPK = {0: X+16, 1: B+8}
    for qt in range(2):
        d0, d1 = DREG[(0, qt)], DREG[(1, qt)]
        regs = [d0+r for r in range(16)] + [d1+r for r in range(9)]
        if slowmax:
            m, t = T1, T2
            p(f'v_max3_f32 {v(m)}, {v(regs[0])}, {v(regs[1])}, {v(regs[2])}')
            for i in range(3, 25, 2): p(f'v_max3_f32 {v(m)}, {v(m)}, {v(regs[i])}, {v(regs[i+1])}')
            p(f'''
            v_mov_b32 {v(t)}, {v(m)}
            v_permlane32_swap_b32 {v(m)}, {v(t)}
            v_max_f32 {v(m)}, {v(m)}, {v(t)}
            ''')
            for r in regs: p(f'v_sub_f32 {v(r)}, {v(r)}, {v(m)}')
        for r in regs: p(f'v_exp_f32 {v(r)}, {v(r)}')
        po = POPS[qt]
        for i in range(8): p(f'v_cvt_pk_bf16_f32 {v(po[i//4] + i%4)}, {v(d0+2*i)}, {v(d0+2*i+1)}')
        p(f'v_cvt_pk_bf16_f32 {v(PZ)}, {v(d1+8)}, 0')
        for i in range(4): p(f'v_cvt_pk_bf16_f32 {v(po[2] + i)}, {v(d1+2*i)}, {v(d1+2*i+1)}')
        o = OACC[qt]
        p(mf32(o, V0, po[0], None))
        p(mf32(o, V0+4, po[1], o))
        p(mf32(o, V1, po[2], o))
        p(mf32k8(o, V1+4, PZ, o))
        rl = T0
        p(f'v_rcp_f32 {v(rl)}, {v(o+12)}')
        for r in range(12): p(f'v_mul_f32 {v(o+r)}, {v(o+r)}, {v(rl)}')
        pk = OPK[qt]
        for i in range(6): p(f'v_cvt_pk_bf16_f32 {v(pk+i)}, {v(o+2*i)}, {v(o+2*i+1)}')
        for i in range(3): p(f'ds_write_b64 {v(OW)}, {vt(pk+2*i,2)} offset:{qt*32*RS + 8*i}')

SCHED = True
def sched(items):
    if not SCHED: return items
    out, t = schedule(items)
    return out

def region(f, *a):
    q = P(); f(q, *a); return q.items

def body(p, name, do_attn, do_proj, slowmax, ool):
    if do_attn:
        p(f's_add_u32 s{sT2}, s{sI}, 1')
        win_index(p, sT2, sN)
        win_scalars(p, sN, sBN, sTN)
        p(f'''
        s_cmp_ge_u32 s{sT2}, s{sCNT}
        s_cselect_b32 s{sTN}, 0, s{sTN}
        s_cselect_b32 s{sT3}, 0, 1
        s_mov_b32 s{sDMAOFF}, s{sBN}
        s_or_b32 s{sT0}, s{sTN}, s{sTC}
        s_cbranch_scc1 {name}_FIXD
        ''')
        p.label(f'{name}_FIXD_RET')
        q = P(); q.label(f'{name}_FIXD')
        q(f'''
        s_cmp_lg_u32 s{sTN}, 0
        s_cselect_b32 s51, s{sBN}, 0
        s_cselect_b32 s{sDMAOFF}, 0, s{sBN}
        s_mov_b32 s96, s{sT3}
        ''')
        dma_offsets(q, list(range(X, X+10)), sbase=51, stype=sTN)
        q(f's_mov_b32 s{sT3}, s96')
        q(f's_branch {name}_FIXD_RET')
        ool.append(q)
    if do_proj:
        p(f'''
        s_mov_b32 s{sSTOFF}, s{sBP}
        s_or_b32 s{sT0}, s{sTP}, s{sTPP}
        s_cbranch_scc1 {name}_FIXS
        ''')
        p.label(f'{name}_FIXS_RET')
        q = P(); q.label(f'{name}_FIXS')
        q(f'''
        s_cmp_lg_u32 s{sTP}, 0
        s_cselect_b32 s51, s{sBP}, 0
        s_cselect_b32 s{sSTOFF}, 0, s{sBP}
        s_mov_b32 s96, s{sT3}
        ''')
        st_offsets(q, list(range(X, X+10)), sbase=51, stype=sTP)
        q(f's_mov_b32 s{sT3}, s96')
        q(f's_branch {name}_FIXS_RET')
        ool.append(q)
    if do_attn:
        p(f'''
        s_add_u32 s{sXM0}, s{sXM0}, s{sDX}
        s_cmp_eq_u32 s{sT3}, 0
        s_cbranch_scc1 {name}_NODMA
        ''')
        dma_issue(p)
        p.label(f'{name}_NODMA')
    main = P()
    if do_proj:
        main(f'v_add_u32 {v(OR)}, s{sDO}, {v(OR)}')
        proj_part(main)
    if do_attn:
        qkv_part(main)
    p.extend(sched(main.items))
    if do_attn:
        p(f'''
        s_cmp_lg_u32 s{sTC}, 0
        s_cbranch_scc1 {name}_MASK
        ''')
        p.extend(sched(region(s_part, False)))
        p.label(f'{name}_MASK_RET')
        q = P(); q.label(f'{name}_MASK')
        q('s_nop 15')
        mask_block(q)
        s_part(q, True)
        q('s_nop 15')
        q(f's_branch {name}_MASK_RET')
        ool.append(q)
        p.extend(sched(region(softmax_part, slowmax)))
        p(f'''
        v_add_u32 {v(XR0)}, s{sDX}, {v(XR0)}
        v_add_u32 {v(XR1)}, s{sDX}, {v(XR1)}
        v_add_u32 {v(OW)}, s{sDO}, {v(OW)}
        s_sub_u32 s{sDX}, 0, s{sDX}
        ''')
    p(f'''
    s_sub_u32 s{sDO}, 0, s{sDO}
    s_mov_b32 s{sTPP}, s{sTP}
    s_mov_b32 s{sTP}, s{sTC}
    s_mov_b32 s{sBP}, s{sBC}
    s_mov_b32 s{sTC}, s{sTN}
    s_mov_b32 s{sBC}, s{sBN}
    s_add_u32 s{sI}, s{sI}, 1
    ''')
    if do_attn:
        nst = 4 if do_proj else 0
        p(f's_waitcnt vmcnt({nst}) lgkmcnt(0)')
        p('s_barrier')

def build():
    p = P()
    prologue(p)
    ool = []
    p(f'''
    s_cmp_lg_u32 s{sMODE}, 0
    s_cbranch_scc1 L_SLOW
    ''')
    for mode, pre in ((False, 'F'), (True, 'S')):
        if mode: p.label('L_SLOW')
        body(p, pre + '0', True, False, mode, ool)
        p.label(pre + '_LOOP')
        body(p, pre + '1', True, True, mode, ool)
        p(f'''
        s_cmp_lt_u32 s{sI}, s{sCNT}
        s_cbranch_scc1 {pre}_LOOP
        ''')
        body(p, pre + '2', False, True, mode, ool)
        p('s_branch L_END' if not mode else 's_nop 0')
    p.label('L_END')
    p('s_endpgm')
    items = p.items
    for q in ool:
        its = q.items
        items.append(its[0])
        items.append(Ins('s_nop 15'))
        items.append(Ins('s_waitcnt lgkmcnt(0)'))
        items.extend(its[1:-1])
        items.append(Ins('s_nop 15'))
        items.append(its[-1])
    items = insert_waits(items)
    items, hist, nn = insert_hazard_nops(items)
    return items, nn

HEADER = open('standalone__window_attn_swin_v2__vision.s.ref').read().split('; @launch')[0]

def emit(path):
    items, nn = build()
    hdr = []
    for l in HEADER.split('\n'):
        if l.startswith(';'): hdr.append(l)
    txt = '\n'.join(hdr) + '\n'
    txt += f'; @launch grid=({NWG},1,1) block=(256,1,1) lds={LDS_BYTES}\n'
    txt += '.amdgcn_target "amdgcn-amd-amdhsa--gfx950"\n.text\n'
    txt += f'.globl {NAME}\n.p2align 8\n.type {NAME},@function\n{NAME}:\n'
    for it in items:
        if isinstance(it, Label): txt += it.text + '\n'
        else: txt += '    ' + it.text + '\n'
    txt += f'''.section .rodata,"a"
.p2align 6
.amdhsa_kernel {NAME}
  .amdhsa_next_free_vgpr 256
  .amdhsa_next_free_sgpr 102
  .amdhsa_accum_offset 256
  .amdhsa_group_segment_fixed_size 0
  .amdhsa_kernarg_size 96
  .amdhsa_user_sgpr_count 2
  .amdhsa_user_sgpr_kernarg_segment_ptr 1
  .amdhsa_system_sgpr_workgroup_id_x 1
.end_amdhsa_kernel
'''
    open(path, 'w').write(txt)
    n = sum(1 for it in items if isinstance(it, Ins))
    print(f'wrote {path}: {n} instructions, {nn} hazard nop states')

if __name__ == '__main__':
    if len(sys.argv) > 2 and sys.argv[2] == 'nosched': SCHED = False
    emit(sys.argv[1] if len(sys.argv) > 1 else 'standalone__window_attn_swin_v2__vision.s')
```

```python
import re

VRE = re.compile(r'^v(\d+)$|^v\[(\d+):(\d+)\]$')
ARE = re.compile(r'^a(\d+)$|^a\[(\d+):(\d+)\]$')
SRE = re.compile(r'^s(\d+)$|^s\[(\d+):(\d+)\]$')

def split_ops(s):
    out, depth, cur = [], 0, ''
    for ch in s:
        if ch == '[': depth += 1
        if ch == ']': depth -= 1
        if ch == ',' and depth == 0:
            out.append(cur.strip()); cur = ''
        else:
            cur += ch
    if cur.strip(): out.append(cur.strip())
    return out

def vset(op):
    op = op.strip()
    neg = op.lstrip('-')
    if neg.startswith('abs(') or neg.startswith('|'):
        neg = neg.replace('abs(', '').replace(')', '').replace('|', '')
    m = VRE.match(neg)
    if not m:
        m = ARE.match(neg)
        if not m: return set()
        if m.group(1) is not None: return {256 + int(m.group(1))}
        return set(range(256 + int(m.group(2)), 256 + int(m.group(3)) + 1))
    if m.group(1) is not None: return {int(m.group(1))}
    return set(range(int(m.group(2)), int(m.group(3)) + 1))

def sset(op):
    op = op.strip().lstrip('-')
    if op == 'vcc': return {'vcc'}
    if op == 'exec': return {'exec'}
    if op == 'm0': return {'m0'}
    if op == 'scc': return {'scc'}
    m = SRE.match(op)
    if not m: return set()
    if m.group(1) is not None: return {int(m.group(1))}
    return set(range(int(m.group(2)), int(m.group(3)) + 1))

TRANS = ('v_exp_f32', 'v_log_f32', 'v_rcp_f32', 'v_rsq_f32', 'v_sqrt_f32', 'v_sin_f32', 'v_cos_f32')

class Ins:
    __slots__ = ('text', 'mn', 'kind', 'vr', 'vw', 'sr', 'sw', 'dpp', 'passes', 'srcc', 'srcab', 'wide', 'tag', 'cmt', 'order_class', 'idx')
    def __init__(self, text, tag=None):
        self.text = text.strip()
        self.tag = tag
        self.idx = -1
        t = self.text.split(';')[0].strip()
        parts = t.split(None, 1)
        mn = parts[0]; self.mn = mn
        rest = parts[1] if len(parts) > 1 else ''
        ops = split_ops(rest)
        mods = ''
        if ops:
            last = ops[-1].split(None, 1)
            ops[-1] = last[0]
            mods = last[1] if len(last) > 1 else ''
        self.vr, self.vw, self.sr, self.sw = set(), set(), set(), set()
        self.dpp = False; self.passes = 0; self.srcc = set(); self.srcab = set(); self.wide = False
        def rd(o):
            self.vr |= vset(o); self.sr |= sset(o)
        def wr(o):
            self.vw |= vset(o); self.sw |= sset(o)
        if mn.startswith('v_mfma'):
            self.kind = 'mfma'
            self.passes = 4 if '16x16' in mn else 8
            wr(ops[0]); rd(ops[1]); rd(ops[2]); rd(ops[3])
            self.srcab = vset(ops[1]) | vset(ops[2]); self.srcc = vset(ops[3])
        elif mn.startswith('v_permlane') and 'swap' in mn:
            self.kind = 'permlane'
            wr(ops[0]); wr(ops[1]); rd(ops[0]); rd(ops[1])
        elif mn.startswith('v_'):
            base = mn.replace('_e32', '').replace('_e64', '').replace('_dpp', '')
            self.kind = 'trans' if base in TRANS else 'valu'
            self.dpp = ('row_' in mods or 'quad_perm' in mods or 'row_' in rest or 'quad_perm' in rest)
            wr(ops[0])
            for o in ops[1:]: rd(o)
            if base.startswith('v_fmac') or base.startswith('v_dot2c'): rd(ops[0])
            if self.dpp:
                m = re.search(r'bank_mask:(0x[0-9a-f]+)', rest); m2 = re.search(r'row_mask:(0x[0-9a-f]+)', rest)
                if (m and int(m.group(1), 16) != 0xf) or (m2 and int(m2.group(1), 16) != 0xf): rd(ops[0])
            if base == 'v_cndmask_b32' and len(ops) == 3: self.sr.add('vcc')
            if base in ('v_readfirstlane_b32', 'v_readlane_b32'): self.kind = 'readlane'
            self.sr.add('exec')
        elif mn.startswith('ds_read') or mn.startswith('ds_bpermute') or mn.startswith('ds_swizzle'):
            self.kind = 'dsr'
            wr(ops[0])
            for o in ops[1:]: rd(o)
            if 'd16' in mn: rd(ops[0])
        elif mn.startswith('ds_write'):
            self.kind = 'dsw'
            for o in ops: rd(o)
        elif mn.startswith('buffer_load') or mn.startswith('global_load'):
            if re.search(r'\blds\b', rest):
                self.kind = 'dma'
                for o in ops: rd(o)
                self.sr.add('m0')
            else:
                self.kind = 'vload'
                wr(ops[0])
                for o in ops[1:]: rd(o)
                if 'd16' in mn: rd(ops[0])
        elif mn.startswith('buffer_store') or mn.startswith('global_store') or mn.startswith('buffer_atomic') or mn.startswith('global_atomic'):
            self.kind = 'vstore'
            for o in ops: rd(o)
            self.wide = ('x3' in mn or 'x4' in mn)
            if self.wide:
                self.srcc = vset(ops[0]) if mn.startswith('buffer') else vset(ops[1])
        elif mn == 's_waitcnt': self.kind = 'waitcnt'
        elif mn == 's_barrier': self.kind = 'barrier'
        elif mn == 's_nop': self.kind = 'nop'
        elif mn.startswith('s_cbranch') or mn == 's_branch' or mn == 's_endpgm' or mn == 's_setprio':
            self.kind = 'branch' if mn != 's_setprio' else 'salu'
            if 'scc' in mn: self.sr.add('scc')
            if 'vcc' in mn: self.sr.add('vcc')
            if 'exec' in mn: self.sr.add('exec')
        elif mn.startswith('s_load') or mn.startswith('s_memtime') or mn.startswith('s_memrealtime'):
            self.kind = 'smem'
            wr(ops[0])
            for o in ops[1:]: rd(o)
        elif mn.startswith('s_'):
            self.kind = 'salu'
            if mn.startswith('s_getreg'):
                wr(ops[0])
            elif mn.startswith('s_cmp') or mn.startswith('s_bitcmp'):
                for o in ops: rd(o)
                self.sw.add('scc')
            else:
                wr(ops[0])
                for o in ops[1:]: rd(o)
                if mn.startswith(('s_add', 's_sub', 's_and', 's_or', 's_xor', 's_lshl', 's_lshr', 's_ashr', 's_min', 's_max', 's_andn2', 's_not', 's_bfe')):
                    self.sw.add('scc')
                if mn in ('s_addc_u32', 's_subb_u32', 's_cselect_b32', 's_cselect_b64'): self.sr.add('scc')
                if 'saveexec' in mn:
                    self.sw.add('exec'); self.sr.add('exec')
                if mn in ('s_addk_i32', 's_mulk_i32'): rd(ops[0])
        else:
            raise ValueError('unknown instruction: ' + text)
    def nopcount(self):
        if self.kind == 'nop':
            return int(self.text.split()[1], 0) + 1
        return 1
    def is_valu(self):
        return self.kind in ('valu', 'trans', 'permlane', 'readlane')

class Label:
    def __init__(self, name, clean=False):
        self.name = name; self.clean = clean; self.kind = 'label'
        self.text = name + ':'

class Raw:
    def __init__(self, text):
        self.text = text; self.kind = 'raw'

def need_states(p, c):
    n = 0
    pk, ck = p.kind, c.kind
    c_valu = c.is_valu()
    if pk == 'mfma':
        far = 8 if p.passes == 4 else 12
        ov = 6 if p.passes == 4 else 10
        D = p.vw
        if ck == 'mfma':
            if D & c.srcab: n = max(n, far)
            if D & c.srcc:
                if c.srcc == D and c.passes == p.passes: pass
                else: n = max(n, ov)
            if (D & c.vw) and not (c.srcc == D and c.vw == D and c.passes == p.passes):
                n = max(n, ov)
        elif c_valu:
            if D & (c.vr | c.vw): n = max(n, far)
            if p.srcc & c.vw: n = max(n, 3 if p.passes == 4 else 7)
        elif ck in ('dsr', 'dsw', 'vload', 'vstore', 'dma'):
            if D & (c.vr | c.vw): n = max(n, far)
            if ck in ('dsr', 'vload') and (p.srcc & c.vw): n = max(n, 3 if p.passes == 4 else 7)
    elif p.is_valu():
        W = p.vw
        if ck == 'mfma' and (W & c.vr): n = max(n, 2)
        if c_valu and c.dpp and (W & c.vr): n = max(n, 2)
        if ck == 'permlane' and (W & c.vr): n = max(n, 2)
        if ck == 'readlane' and (W & c.vr): n = max(n, 1)
        if pk == 'trans' and c_valu and c.kind != 'trans' and (W & c.vr): n = max(n, 1)
        if pk == 'trans' and ck in ('mfma',) and (W & c.vr): n = max(n, 2)
        if p.mn.startswith('v_dot') and (W & (c.vr | c.vw)) and not (c.mn == p.mn):
            n = max(n, 3)
        SW = p.sw
        if SW:
            if (c_valu or ck == 'mfma') and (SW & c.sr): n = max(n, 2)
            if ck in ('vload', 'vstore', 'dma') and (SW & c.sr): n = max(n, 5)
            if ck in ('salu', 'branch', 'smem') and (SW & c.sr): n = max(n, 4)
            if 'exec' in SW and ck == 'mfma': n = max(n, 4)
            if 'exec' in SW and c_valu and c.dpp: n = max(n, 5)
    elif pk == 'vstore' and p.wide:
        if p.srcc & c.vw: n = max(n, 2)
    elif pk == 'salu':
        if 'm0' in p.sw and ck == 'dma': n = max(n, 1)
    return n

MAXLOOK = 16

def insert_hazard_nops(items, init_hist=None):
    out = []
    hist = list(init_hist or [])
    nn = 0
    for it in items:
        if not isinstance(it, Ins):
            out.append(it); continue
        need = 0
        dist = 0
        for p in reversed(hist):
            if dist >= MAXLOOK: break
            r = need_states(p, it)
            if r > dist: need = max(need, r - dist)
            dist += p.nopcount()
        while need > 0:
            k = min(need, 16)
            nop = Ins(f's_nop {k-1}')
            out.append(nop); hist.append(nop); need -= k; nn += k
        out.append(it); hist.append(it)
        if len(hist) > 40: hist = hist[-40:]
    return out, hist, nn

def flush_nops(hist):
    need = 0; dist = 0
    for p in reversed(hist):
        if dist >= MAXLOOK: break
        r = 0
        if p.kind == 'mfma': r = 8 if p.passes == 4 else 12
        elif p.is_valu(): r = 5 if p.sw - {'exec'} else 2
        elif p.kind == 'vstore' and p.wide: r = 2
        elif p.kind == 'salu' and 'm0' in p.sw: r = 1
        if r > dist: need = max(need, r - dist)
        dist += p.nopcount()
    return need

def insert_waits(items, lgkm_max=15, vm_auto=True, merge_t=170):
    out = []
    lq = []
    vq = []
    smem_pending = set()
    now = 0; lt = []
    for it in items:
        if isinstance(it, Label):
            out.append(it); continue
        if not isinstance(it, Ins):
            out.append(it); continue
        if it.kind == 'waitcnt':
            m = re.search(r'lgkmcnt\((\d+)\)', it.text)
            if m:
                n = int(m.group(1)); lq = lq[len(lq)-n:] if n < len(lq) and n > 0 else ([] if n == 0 else lq)
                lt = lt[len(lt)-len(lq):] if lq else []
                if n == 0: smem_pending = set()
            m = re.search(r'vmcnt\((\d+)\)', it.text)
            if m:
                n = int(m.group(1)); vq = vq[len(vq)-n:] if n < len(vq) and n > 0 else ([] if n == 0 else vq)
            out.append(it); continue
        touch = it.vr | it.vw
        wl = None
        for i in range(len(lq) - 1, -1, -1):
            if lq[i] & touch:
                wl = len(lq) - 1 - i; break
        wv = None
        if vm_auto:
            for i in range(len(vq) - 1, -1, -1):
                if vq[i] & touch:
                    wv = len(vq) - 1 - i; break
        st = (it.sr | it.sw)
        if smem_pending & st:
            wl = 0
        if smem_pending and wl is not None: wl = 0
        if wl is not None and merge_t:
            while wl > 0 and now - lt[len(lq) - wl] >= merge_t: wl -= 1
        if wl is not None or wv is not None:
            s = 's_waitcnt'
            if wv is not None:
                wv = min(wv, 63); s += f' vmcnt({wv})'; vq = vq[len(vq)-wv:] if wv > 0 else []
            if wl is not None:
                wl = min(wl, lgkm_max); s += f' lgkmcnt({wl})'; lq = lq[len(lq)-wl:] if wl > 0 else []
                lt = lt[len(lt)-len(lq):] if lq else []
                if wl == 0: smem_pending = set()
            out.append(Ins(s))
        out.append(it)
        now += ISSUE_EST(it)
        if it.kind == 'dsr': lq.append(set(it.vw)); lt.append(now)
        elif it.kind == 'dsw': lq.append(set()); lt.append(now)
        elif it.kind == 'smem': smem_pending |= it.sw;
        elif it.kind == 'vload': vq.append(set(it.vw))
        elif it.kind in ('vstore', 'dma'): vq.append(set())
    return out

def ISSUE_EST(it):
    if it.kind == 'nop': return 4 * it.nopcount()
    if it.kind == 'mfma': return 4 * it.passes if False else 8
    return ISSUE.get(it.kind, 4)

import subprocess, os, tempfile
PROMOTABLE = ('v_mul_f32', 'v_add_f32', 'v_sub_f32', 'v_fmac_f32', 'v_mov_b32', 'v_add_u32', 'v_and_b32', 'v_or_b32', 'v_max_f32',
              'v_exp_f32', 'v_rcp_f32', 'v_rsq_f32', 'v_lshlrev_b32', 'v_lshrrev_b32', 'v_sub_u32', 'v_mul_u32_u24', 'v_min_u32')
def instr_sizes(ins_list):
    txt = '.amdgcn_target "amdgcn-amd-amdhsa--gfx950"\n.text\n'
    labs = set()
    for it in ins_list:
        if it.kind == 'branch' and it.mn != 's_endpgm':
            txt += it.mn + ' LX\n'
        else: txt += it.text + '\n'
    txt += 'LX:\ns_endpgm\n'
    d = tempfile.mkdtemp()
    open(d + '/a.s', 'w').write(txt)
    r = subprocess.run(['clang', '-x', 'assembler', '-target', 'amdgcn-amd-amdhsa', '-mcpu=gfx950', '-c', d + '/a.s', '-o', d + '/a.o'], capture_output=True, text=True)
    assert r.returncode == 0, r.stderr[:2000]
    o = subprocess.run(['llvm-objdump', '-d', '--mcpu=gfx950', d + '/a.o'], capture_output=True, text=True).stdout
    sizes = []
    for l in o.split('\n'):
        m = re.search(r'// ([0-9A-F]{12}): ((?:[0-9A-F]{8} ?)+)', l)
        if m: sizes.append(4 * len(m.group(2).split()))
    return sizes[:len(ins_list)]

def align_pass(items, start_label, end_pred):
    idx0 = next(i for i, it in enumerate(items) if isinstance(it, Label) and it.name == start_label)
    idx1 = next(i for i in range(idx0 + 1, len(items)) if isinstance(items[i], Ins) and end_pred(items[i]))
    seg = [i for i in range(idx0 + 1, idx1 + 1) if isinstance(items[i], Ins)]
    sizes = instr_sizes([items[i] for i in seg])
    assert len(sizes) == len(seg), (len(sizes), len(seg))
    addr = 0; run = []; mis = 0; fixed = 0
    for k, i in enumerate(seg):
        sz = sizes[k]; it = items[i]
        if sz == 8:
            if addr % 8 == 4:
                cand = [j for j in run if items[j].mn in PROMOTABLE and not items[j].dpp]
                if cand:
                    j = cand[-1]
                    t = items[j].text
                    items[j] = Ins(t.replace(items[j].mn, items[j].mn + '_e64', 1))
                    addr += 4; fixed += 1
                else: mis += 1
            run = []
        else:
            run.append(i)
        addr += sz
    return items

ISSUE = {'valu': 4, 'trans': 8, 'permlane': 8, 'readlane': 4, 'mfma': 8, 'dsr': 4, 'dsw': 6, 'vload': 4, 'vstore': 4, 'dma': 4,
         'salu': 4, 'smem': 4, 'nop': 4, 'waitcnt': 4}

def latency(p, c, LDS_LAT=130):
    base = ISSUE.get(p.kind, 4)
    ns = need_states(p, c)
    lat = base + 4 * ns if ns else base
    if p.kind == 'mfma':
        pipe = 4 * p.passes
        if c.kind == 'mfma' and ns == 0 and (p.vw & c.srcc): lat = pipe
        elif ns: lat = max(lat, 4 * (ns + 1))
    if p.kind == 'dsr' and (p.vw & (c.vr | c.vw)): lat = LDS_LAT
    if p.kind == 'vload' and (p.vw & (c.vr | c.vw)): lat = 800
    return lat

LDS_GAP = 16
def schedule(ins, LDS_LAT=150, keep_order_kinds=('vstore', 'dma', 'vload'), verbose=False, prio_boost=None, trace=None):
    n = len(ins)
    preds = [[] for _ in range(n)]; succs = [[] for _ in range(n)]
    lastw = {}; readers = {}
    def key_sets(i):
        I = ins[i]
        R = {('v', r) for r in I.vr} | {('s', r) for r in I.sr if r != 'exec'}
        W = {('v', r) for r in I.vw} | {('s', r) for r in I.sw}
        return R, W
    last_vm = None; last_dsw = None; ds_since = []
    for i in range(n):
        R, W = key_sets(i)
        deps = set()
        for r in R:
            if r in lastw: deps.add(lastw[r])
        for w in W:
            if w in lastw: deps.add(lastw[w])
            for j in readers.get(w, ()): deps.add(j)
        I = ins[i]
        if I.kind in keep_order_kinds or (I.kind == 'salu' and 'm0' in I.sw):
            if last_vm is not None: deps.add(last_vm)
            last_vm = i
        deps.discard(i)
        for d in deps:
            preds[i].append(d); succs[d].append(i)
        for w in W:
            lastw[w] = i; readers[w] = []
        for r in R:
            if r not in W: readers.setdefault(r, []).append(i)
    lat = {}
    for i in range(n):
        for d in preds[i]:
            p, c = ins[d], ins[i]
            true_dep = bool((p.vw & (c.vr | c.vw)) or (p.sw & (c.sr | c.sw)))
            if true_dep or need_states(p, c): l = latency(p, c, LDS_LAT)
            else: l = ISSUE.get(p.kind, 4) if p.kind != 'mfma' else 8
            lat[(d, i)] = l
    prio = [0] * n
    for i in range(n - 1, -1, -1):
        best = 0
        for s in succs[i]: best = max(best, lat[(i, s)] + prio[s])
        prio[i] = best + (0 if succs[i] else ISSUE.get(ins[i].kind, 4))
        if prio_boost: prio[i] += prio_boost(ins[i])
    npred = [len(p) for p in preds]
    ready_t = [0] * n
    ready = [i for i in range(n) if npred[i] == 0]
    t = 0; pipe_free = 0; lds_free = 0
    order = []
    while ready:
        def est(i):
            e = max(t, ready_t[i])
            if ins[i].kind == 'mfma': e = max(e, pipe_free)
            if ins[i].kind in ('dsr', 'dsw'): e = max(e, lds_free)
            return e
        emin = min(est(i) for i in ready)
        cands = [i for i in ready if est(i) <= emin]
        cands.sort(key=lambda i: (-prio[i], i))
        i = cands[0]
        st = est(i)
        if trace is not None: trace.append((st, st - t, ins[i].text))
        order.append(i); ready.remove(i)
        I = ins[i]
        t = st + ISSUE.get(I.kind, 4)
        if I.kind == 'mfma': pipe_free = st + 4 * I.passes
        if I.kind in ('dsr', 'dsw'): lds_free = st + LDS_GAP
        for s in succs[i]:
            ready_t[s] = max(ready_t[s], st + lat[(i, s)])
            npred[s] -= 1
            if npred[s] == 0: ready.append(s)
    assert len(order) == n
    if verbose: print(f'; scheduled {n} instrs, est cycles {t}')
    return [ins[i] for i in order], t


def schedule2(ins, LDS_LAT=170, lds_gap=8, keep_order_kinds=('vstore', 'dma', 'vload'), trace=None, boost=None, vmem_cost=16):
    n = len(ins)
    preds = [[] for _ in range(n)]; succs = [[] for _ in range(n)]
    lastw = {}; readers = {}
    last_vm = None
    for i in range(n):
        I = ins[i]
        R = {('v', r) for r in I.vr} | {('s', r) for r in I.sr if r != 'exec'}
        W = {('v', r) for r in I.vw} | {('s', r) for r in I.sw}
        deps = set()
        for r in R:
            if r in lastw: deps.add(lastw[r])
        for w in W:
            if w in lastw: deps.add(lastw[w])
            for j in readers.get(w, ()): deps.add(j)
        if I.kind in keep_order_kinds or (I.kind == 'salu' and 'm0' in I.sw):
            if last_vm is not None: deps.add(last_vm)
            last_vm = i
        deps.discard(i)
        for d in deps:
            preds[i].append(d); succs[d].append(i)
        for w in W:
            lastw[w] = i; readers[w] = []
        for r in R:
            if r not in W: readers.setdefault(r, []).append(i)
    def cost(I):
        if I.kind in ('vstore', 'dma'): return vmem_cost
        return ISSUE.get(I.kind, 4)
    lat = {}; nst = {}
    for i in range(n):
        for d in preds[i]:
            p, c = ins[d], ins[i]
            ns = need_states(p, c)
            true_dep = bool((p.vw & (c.vr | c.vw)) or (p.sw & (c.sr | c.sw)))
            l = cost(p)
            if p.kind == 'mfma':
                if c.kind == 'mfma' and ns == 0 and (p.vw & c.srcc): l = 4 * p.passes
                elif ns: l = 4 * (ns + 1)
            if p.kind == 'dsr' and (p.vw & (c.vr | c.vw)): l = LDS_LAT
            lat[(d, i)] = l; nst[(d, i)] = ns
    prio = [0] * n
    for i in range(n - 1, -1, -1):
        best = 0
        for s_ in succs[i]: best = max(best, max(lat[(i, s_)], 4 * (nst[(i, s_)] + 1)) + prio[s_])
        prio[i] = best + (0 if succs[i] else cost(ins[i]))
        if boost: prio[i] += boost(ins[i])
    npred = [len(p) for p in preds]
    ready_t = [0] * n
    pos = [None] * n
    ready = [i for i in range(n) if npred[i] == 0]
    t = 0; pipe_free = 0; lds_free = 0; k = 0
    order = []
    while ready:
        def est(i):
            e = max(t, ready_t[i])
            kd = ins[i].kind
            if kd == 'mfma': e = max(e, pipe_free)
            if kd in ('dsr', 'dsw'): e = max(e, lds_free)
            need = 0
            for d in preds[i]:
                ns = nst[(d, i)]
                if ns: need = max(need, ns - (k - pos[d] - 1))
            if need > 0: e = max(e, t + 4 * need)
            return e
        E = {i: est(i) for i in ready}
        emin = min(E.values())
        cands = [i for i in ready if E[i] <= emin]
        mf = [i for i in cands if ins[i].kind == 'mfma']
        if mf:
            i = max(mf, key=lambda j: (prio[j], -j))
        else:
            mfs = [i for i in ready if ins[i].kind == 'mfma']
            pick = cands
            if mfs:
                em = min(E[j] for j in mfs)
                fit = [j for j in cands if emin + cost(ins[j]) <= em]
                if fit: pick = fit
            i = max(pick, key=lambda j: (prio[j], -j))
        st = E[i]
        if trace is not None: trace.append((st, st - t, ins[i].text))
        order.append(i); ready.remove(i)
        pos[i] = k; k += 1
        I = ins[i]
        t = st + cost(I)
        if I.kind == 'mfma': pipe_free = st + 4 * I.passes
        if I.kind in ('dsr', 'dsw'): lds_free = st + lds_gap
        for s_ in succs[i]:
            ready_t[s_] = max(ready_t[s_], st + lat[(i, s_)])
            npred[s_] -= 1
            if npred[s_] == 0: ready.append(s_)
    assert len(order) == n
    return [ins[i] for i in order], t


class Bundle:
    def __init__(self, subs, cost):
        self.subs = subs; self.cost = cost
        self.kind = subs[0].kind; self.mn = subs[0].mn; self.text = ' | '.join(x.text for x in subs)
        self.vr = set().union(*[x.vr for x in subs]); self.vw = set().union(*[x.vw for x in subs])
        self.sr = set().union(*[x.sr for x in subs]); self.sw = set().union(*[x.sw for x in subs])
        self.dpp = False; self.passes = 0; self.srcc = set(); self.srcab = set(); self.wide = False; self.tag = None
    def nopcount(self): return len(self.subs)
    def is_valu(self): return False

COST = dict(valu=4, trans=8, permlane=8, readlane=4, mfma=8, dsr=10, dsw=18, vload=10, vstore=30, dma=18, salu=4, smem=4, nop=4, waitcnt=4)

def schedule3(ins, LDS_LAT=170, vm_gap=0, keep_order_kinds=('vstore', 'dma', 'vload'), trace=None, boost=None, tail_lat=None, VLOAD_LAT=None):
    n = len(ins)
    preds = [[] for _ in range(n)]; succs = [[] for _ in range(n)]
    lastw = {}; readers = {}
    last_vm = None
    for i in range(n):
        I = ins[i]
        R = {('v', r) for r in I.vr} | {('s', r) for r in I.sr if r != 'exec'}
        W = {('v', r) for r in I.vw} | {('s', r) for r in I.sw}
        deps = set()
        for r in R:
            if r in lastw: deps.add(lastw[r])
        for w in W:
            if w in lastw: deps.add(lastw[w])
            for j in readers.get(w, ()): deps.add(j)
        if I.kind in keep_order_kinds or (I.kind == 'salu' and 'm0' in I.sw):
            if last_vm is not None: deps.add(last_vm)
            last_vm = i
        deps.discard(i)
        for d in deps:
            preds[i].append(d); succs[d].append(i)
        for w in W:
            lastw[w] = i; readers[w] = []
        for r in R:
            if r not in W: readers.setdefault(r, []).append(i)
    def cost(I):
        if isinstance(I, Bundle): return I.cost
        return COST.get(I.kind, 4)
    lat = {}; nst = {}
    for i in range(n):
        for d in preds[i]:
            p, c = ins[d], ins[i]
            ns = need_states(p, c)
            l = cost(p)
            if p.kind == 'mfma':
                if c.kind == 'mfma' and ns == 0 and (p.vw & c.srcc): l = 4 * p.passes
                elif ns: l = 4 * (ns + 1)
            if p.kind == 'dsr' and (p.vw & (c.vr | c.vw)): l = LDS_LAT + cost(p)
            if p.kind == 'vload' and VLOAD_LAT and (p.vw & (c.vr | c.vw)): l = VLOAD_LAT
            if p.kind == 'smem' and (p.sw & c.sr): l = 700
            lat[(d, i)] = l; nst[(d, i)] = ns
    prio = [0] * n
    for i in range(n - 1, -1, -1):
        best = 0
        for s_ in succs[i]: best = max(best, max(lat[(i, s_)], 4 * (nst[(i, s_)] + 1)) + prio[s_])
        if not succs[i]: best = cost(ins[i])
        if tail_lat: best = max(best, tail_lat(ins[i]))
        prio[i] = best
        if boost: prio[i] += boost(ins[i])
    npred = [len(p) for p in preds]
    ready_t = [0] * n
    pos = [None] * n
    ready = [i for i in range(n) if npred[i] == 0]
    t = 0; pipe_free = 0; vm_free = 0; k = 0
    order = []
    VM = ('vstore', 'dma', 'vload')
    while ready:
        def est(i):
            e = max(t, ready_t[i])
            kd = ins[i].kind
            if kd == 'mfma': e = max(e, pipe_free)
            if kd in VM: e = max(e, vm_free)
            need = 0
            for d in preds[i]:
                ns = nst[(d, i)]
                if ns: need = max(need, ns - (k - pos[d] - ins[d].nopcount()))
            if need > 0: e = max(e, t + 4 * need)
            return e
        E = {i: est(i) for i in ready}
        emin = min(E.values())
        cands = [i for i in ready if E[i] <= emin]
        mf = [i for i in cands if ins[i].kind == 'mfma']
        if mf:
            i = max(mf, key=lambda j: (prio[j], -j))
        else:
            mfs = [i for i in ready if ins[i].kind == 'mfma']
            pick = cands
            if mfs:
                em = min(E[j] for j in mfs)
                fit = [j for j in cands if emin + cost(ins[j]) <= em]
                if fit: pick = fit
            i = max(pick, key=lambda j: (prio[j], -j))
        st = E[i]
        if trace is not None: trace.append((st, st - t, ins[i].text))
        order.append(i); ready.remove(i)
        pos[i] = k; k += ins[i].nopcount()
        I = ins[i]
        t = st + cost(I)
        if I.kind == 'mfma': pipe_free = st + 4 * I.passes
        if I.kind in VM: vm_free = st + (vm_gap(I) if callable(vm_gap) else vm_gap)
        for s_ in succs[i]:
            ready_t[s_] = max(ready_t[s_], st + lat[(i, s_)])
            npred[s_] -= 1
            if npred[s_] == 0: ready.append(s_)
    assert len(order) == n
    out = []
    for i in order:
        if isinstance(ins[i], Bundle): out.extend(ins[i].subs)
        else: out.append(ins[i])
    return out, t
```

```python
import sys, struct, math
from asmdsl import *

NAME = "standalone__window_attn_swin_v2__vision_kernel"
NWG = 512
NWIN = 5329
ROWB = 511 * 192
TOTAL = 511 * 511 * 192
RS = 208
XSZ = 12288
OB0, OSZ = 36864, 10400
WO = 57664
TAB = 76096
LDS_BYTES = 79872
STG = 24576
LOG2E = 1.4426950408889634
TAU_THR = 45.0
OOB = 0x40000000

def f2u(x): return struct.unpack('<I', struct.pack('<f', x))[0]
def hx(x): return f'0x{x & 0xffffffff:08x}'
def fl(x): return hx(f2u(x))

WQ, WK, WV = 0, 24, 48
B00, B10, B01, B11 = 72, 88, 98, 114
BIAS = {(0, 0): B00, (1, 0): B10, (0, 1): B01, (1, 1): B11}
XR0, XR1, OW, OR, WOA = 124, 125, 126, 127, 128
DM = [129, 130, 131]
ST = [132, 133, 134, 135]
ONA, ONB = 136, 138
CQ = 140
T0 = 141
PZ = 142
Q0, Q1, K0, K1, V0, V1 = 144, 150, 156, 162, 168, 176
QOP = [Q0, Q1]; KOP = [K0, K1]
X = 182
A, B, C = 206, 222, 238
T1, T2 = 254, 255
def v(i): return f'v{i}'
def vt(i, n): return f'v[{i}:{i+n-1}]'

SX, SO = 4, 8
S_W, S_WO, S_RC, S_W1, S_W2 = 12, 16, 20, 24, 28
sH = 32
sI, sCNT = 33, 34
sWH, sWW = 35, 36
sB2, sB1, sB0, sBM = 37, 38, 39, 40
sTQ = 41
sDMAOFF, sSTOFF = 42, 43
sXC, sXD = 44, 45
sXT = 46
sDO = 47
sEPSH = 48
sMODE = 49
sBST = 50
sT0, sT1, sT2, sT3, sT4, sT5 = 51, 52, 53, 54, 55, 56
sKP, sKM = 57, 58
sXTL = 59

STAMP = False
SCHED = True
PRIO = None
S_WS = 12

class P:
    def __init__(self): self.items = []
    def __call__(self, text, tag=None):
        for line in text.strip().split('\n'):
            line = line.strip()
            if not line or line.startswith(';'): continue
            self.items.append(Ins(line, tag))
    def label(self, name): self.items.append(Label(name))
    def extend(self, items): self.items.extend(items)

def stamp(p, idx_sgpr, imm, vt0, vt1):
    if not STAMP: return
    p(f"""
    s_memtime s[96:97]
    s_waitcnt lgkmcnt(0)
    v_mov_b32 v{vt0}, s96
    s_lshl_b32 s97, s2, 2
    s_add_u32 s97, s97, s{sH}
    s_lshl_b32 s97, s97, 9
    v_mov_b32 v{vt1}, s97
    buffer_store_dword v{vt0}, v{vt1}, s[{S_WS}:{S_WS+3}], {idx_sgpr} offen offset:{imm}
    """)

def lane_id(p, d):
    p(f'''
    v_mbcnt_lo_u32_b32 {v(d)}, -1, 0
    v_mbcnt_hi_u32_b32 {v(d)}, -1, {v(d)}
    ''')

def tok_rel(p, t, dst, ti, wrap=None, tj=None, tmp=None):
    p(f'''
    v_mul_u32_u24 {v(ti)}, 37, {v(t)}
    v_lshrrev_b32 {v(ti)}, 8, {v(ti)}
    v_mul_u32_u24 {v(dst)}, 96768, {v(ti)}
    v_mul_u32_u24 {v(tmp)}, 192, {v(t)}
    v_add_u32 {v(dst)}, {v(dst)}, {v(tmp)}
    ''')
    if wrap is not None:
        p(f'''
        v_mad_i32_i24 {v(tj)}, {v(ti)}, -7, {v(t)}
        v_add_u32 {v(dst)}, s{wrap}, {v(dst)}
        v_mov_b32 {v(tmp)}, s{sT2}
        v_cmp_le_u32 vcc, 4, {v(ti)}
        v_cndmask_b32_e64 {v(tmp)}, 0, {v(tmp)}, vcc
        v_sub_u32 {v(dst)}, {v(dst)}, {v(tmp)}
        v_mov_b32 {v(tmp)}, s{sT3}
        v_cmp_le_u32 vcc, 4, {v(tj)}
        v_cndmask_b32_e64 {v(tmp)}, 0, {v(tmp)}, vcc
        v_sub_u32 {v(dst)}, {v(dst)}, {v(tmp)}
        ''')

def wrap_consts(p, stype):
    p(f'''
    s_bitcmp1_b32 s{stype}, 1
    s_cselect_b32 s{sT2}, {TOTAL}, 0
    s_bitcmp1_b32 s{stype}, 0
    s_cselect_b32 s{sT3}, {ROWB}, 0
    ''')

def dma_offsets(p, tid, tmps, wrap=None):
    pp, t, c, ti, tj, tmp = tmps[:6]
    for k in range(3):
        p(f'''
        v_add_u32 {v(pp)}, {256*k}, {v(tid)}
        v_mul_u32_u24 {v(t)}, 5042, {v(pp)}
        v_lshrrev_b32 {v(t)}, 16, {v(t)}
        v_mad_i32_i24 {v(c)}, {v(t)}, -13, {v(pp)}
        v_min_u32 {v(c)}, 11, {v(c)}
        v_min_u32 {v(t)}, 48, {v(t)}
        ''')
        tok_rel(p, t, DM[k], ti, wrap, tj, tmp)
        p(f'v_lshl_add_u32 {v(DM[k])}, {v(c)}, 4, {v(DM[k])}')

def st_offsets(p, ln, tmps, wrap=None):
    g4, t, c, ti, tj, tmp, big = tmps[:7]
    p(f'''
    v_lshrrev_b32 {v(g4)}, 4, {v(ln)}
    v_lshlrev_b32 {v(g4)}, 2, {v(g4)}
    s_lshl_b32 s{sT0}, s{sH}, 4
    v_add_u32 {v(g4)}, s{sT0}, {v(g4)}
    v_and_b32 {v(c)}, 15, {v(ln)}
    v_mul_u32_u24 {v(c)}, 12, {v(c)}
    v_mov_b32 {v(big)}, 0x80000000
    ''')
    for r in range(4):
        p(f'v_add_u32 {v(t)}, {r}, {v(g4)}')
        tok_rel(p, t, ST[r], ti, wrap, tj, tmp)
        p(f'''
        v_add_u32 {v(ST[r])}, {v(ST[r])}, {v(c)}
        v_cmp_lt_u32 vcc, 48, {v(t)}
        v_cndmask_b32 {v(ST[r])}, {v(ST[r])}, {v(big)}, vcc
        ''')

def dma_issue(p, starget, soff):
    for k in range(3):
        if k == 0: p(f's_mov_b32 m0, s{starget}')
        else: p(f's_add_u32 m0, s{starget}, {4096*k}')
        p(f'buffer_load_dwordx4 {v(DM[k])}, s[{SX}:{SX+3}], s{soff} offen lds')

def kcode(k): return k + 6 * (k // 7)

def bias_gather(p, ln, tmps):
    n32, hf, q, qi, neg = tmps[:5]
    A4 = [tmps[5], tmps[7]]; A10 = [tmps[6], tmps[8]]
    p(f'''
    v_and_b32 {v(n32)}, 31, {v(ln)}
    v_lshrrev_b32 {v(hf)}, 5, {v(ln)}
    s_mul_i32 s{sT0}, s{sH}, 768
    s_add_u32 s{sT0}, s{sT0}, {TAB + 4*84}
    v_mov_b32 {v(neg)}, {fl(-1e30)}
    ''')
    for qt in range(2):
        p(f'''
        v_add_u32 {v(q)}, {32*qt}, {v(n32)}
        v_min_u32 {v(q)}, 48, {v(q)}
        v_mul_u32_u24 {v(qi)}, 37, {v(q)}
        v_lshrrev_b32 {v(qi)}, 8, {v(qi)}
        v_mul_u32_u24 {v(qi)}, 6, {v(qi)}
        v_add_u32 {v(q)}, {v(q)}, {v(qi)}
        v_lshlrev_b32 {v(q)}, 2, {v(q)}
        v_sub_u32 {v(q)}, s{sT0}, {v(q)}
        v_lshl_add_u32 {v(A4[qt])}, {v(hf)}, 4, {v(q)}
        v_mul_u32_u24 {v(qi)}, 40, {v(hf)}
        v_add_u32 {v(A10[qt])}, {v(q)}, {v(qi)}
        ''')
        for kt in range(2):
            for r in range(16 if kt == 0 else 9):
                key0 = 32*kt + (r & 3) + 8*(r >> 2)
                d = kcode(key0+4) - kcode(key0)
                assert d in (4, 10)
                adr = (A4 if d == 4 else A10)[qt]
                p(f'ds_read_b32 {v(BIAS[(kt,qt)]+r)}, {v(adr)} offset:{4*kcode(key0)}')
    p(f'v_cmp_lt_u32 vcc, 31, {v(ln)}')
    for qt in range(2):
        r = BIAS[(1, qt)] + 8
        p(f'v_cndmask_b32 {v(r)}, {v(r)}, {v(neg)}, vcc')

def mf32(d, a, b, c): return f'v_mfma_f32_32x32x16_bf16 {vt(d,16)}, {vt(a,4)}, {vt(b,4)}, ' + (vt(c,16) if c is not None else '0')
def mf32k8(d, a, b, c): return f'v_mfma_f32_32x32x8_bf16 {vt(d,16)}, {vt(a,2)}, {vt(b,2)}, ' + (vt(c,16) if c is not None else '0')
def mf16(d, a, b, c): return f'v_mfma_f32_16x16x32_bf16 {vt(d,4)}, {vt(a,4)}, {vt(b,4)}, ' + (vt(c,4) if c is not None else '0')

def next_window(p):
    p(f'''
    s_add_u32 s{sWW}, s{sWW}, 1
    s_add_u32 s{sWH}, s{sWH}, 7
    s_add_u32 s{sB2}, s{sB2}, {7*7*ROWB + 1344}
    s_cmp_eq_u32 s{sWW}, 73
    s_cselect_b32 s{sT0}, {7*ROWB - 73*1344}, 0
    s_cselect_b32 s{sWW}, 0, s{sWW}
    s_addc_u32 s{sWH}, s{sWH}, 0
    s_add_u32 s{sB2}, s{sB2}, s{sT0}
    ''')
    window_type(p)

def window_type(p):
    p(f'''
    s_lshl_b32 s{sTQ}, s{sTQ}, 2
    s_cmp_eq_u32 s{sWH}, 72
    s_cselect_b32 s{sT0}, 2, 0
    s_cmp_eq_u32 s{sWW}, 72
    s_cselect_b32 s{sT1}, 1, 0
    s_or_b32 s{sT0}, s{sT0}, s{sT1}
    s_or_b32 s{sTQ}, s{sTQ}, s{sT0}
    s_and_b32 s{sTQ}, s{sTQ}, 0x3ff
    ''')

def prologue(p, ool):
    TID = 255; LN = 254
    p(f'''
    s_cmp_ge_u32 s2, {NWG}
    s_cbranch_scc1 L_END
    ''')
    if STAMP:
        p('''
        s_memtime s[100:101]
        s_memrealtime s[98:99]
        s_waitcnt lgkmcnt(0)
        v_mov_b32 v250, s100
        v_mov_b32 v251, s98
        ''')
    p(f'''
    s_load_dwordx16 s[64:79], s[0:1], 0
    s_load_dwordx2 s[80:81], s[0:1], 72
    v_mov_b32 {v(TID)}, v0
    v_and_b32 {v(LN)}, 63, v0
    v_lshrrev_b32 v1, 6, v0
    s_and_b32 s{sT0}, s2, 7
    s_lshl_b32 s{sT0}, s{sT0}, 5
    v_readfirstlane_b32 s{sH}, v1
    s_bfe_u32 s{sT1}, s2, 0x50003
    s_add_u32 s{sT0}, s{sT0}, s{sT1}
    s_and_b32 s{sT1}, s2, 256
    s_add_u32 s{sT0}, s{sT0}, s{sT1}
    s_cmp_lt_u32 s{sT0}, {NWIN - 10*NWG}
    s_cselect_b32 s{sCNT}, 11, 10
    s_mul_hi_u32 s{sWH}, s{sT0}, 58835169
    s_mul_i32 s{sT1}, s{sWH}, 73
    s_sub_u32 s{sWW}, s{sT0}, s{sT1}
    s_mul_i32 s{sB2}, s{sWH}, {7*ROWB}
    s_mul_i32 s{sT1}, s{sWW}, 1344
    s_add_u32 s{sB2}, s{sB2}, s{sT1}
    s_add_u32 s{sB2}, s{sB2}, {(3*511+3)*192}
    s_mov_b32 s{sTQ}, 0
    s_mov_b32 s{sI}, 0
    s_mov_b32 s{sBST}, 0
    s_mov_b32 s{sEPSH}, {fl(0.5e-12)}
    ''')
    window_type(p)
    n32, hf = 248, 249
    p(f'''
    v_and_b32 {v(n32)}, 31, {v(LN)}
    v_lshrrev_b32 {v(hf)}, 5, {v(LN)}
    ''')
    dma_offsets(p, TID, list(range(202, 208)))
    p('s_waitcnt lgkmcnt(0)')
    if STAMP: p('s_memtime s[86:87]')
    def srd(d, ptr, nbytes):
        p(f'''
        s_mov_b32 s{d}, s{ptr}
        s_and_b32 s{d+1}, s{ptr+1}, 0xffff
        s_mov_b32 s{d+2}, {nbytes}
        s_mov_b32 s{d+3}, 0x00020000
        ''')
    srd(S_W, 66, 96*288*2)
    p(f'''
    s_mul_i32 s{sT0}, s{sH}, 14336
    v_lshlrev_b32 v208, 4, {v(LN)}
    s_add_u32 m0, s{sT0}, {STG}
    ''')
    for k in range(14):
        if k % 4 == 0 and k > 0:
            p(f'''
            s_add_u32 s{sT0}, s{sT0}, 4096
            s_add_u32 m0, s{sT0}, {STG}
            ''')
        p(f'buffer_load_dwordx4 v208, s[{S_W}:{S_W+3}], s{sT0} offen offset:{1024*(k%4)} lds')
    srd(SX, 64, TOTAL)
    p(f's_load_dword s82, s[70:71], 0')
    p(f's_load_dword s83, s[70:71], 4')
    srd(S_WO, 68, 96*96*2); srd(S_RC, 76, 169*4); srd(S_W1, 72, 64); srd(S_W2, 74, 128)
    p(f'''
    s_lshl_b32 s{sXT}, s{sH}, 10
    s_mov_b32 s{sDMAOFF}, s{sB2}
    s_and_b32 s{sT0}, s{sTQ}, 0xf
    s_cbranch_scc1 PFIX0
    ''')
    p.label('PFIX0_RET')
    dma_issue(p, sXT, sDMAOFF)
    p(f's_mov_b32 s{sB1}, s{sB2}')
    next_window(p)
    p(f'''
    s_add_u32 s{sXT}, s{sXT}, {XSZ}
    s_mov_b32 s{sDMAOFF}, s{sB2}
    s_and_b32 s{sT0}, s{sTQ}, 0xf
    s_cbranch_scc1 PFIX1
    ''')
    p.label('PFIX1_RET')
    dma_issue(p, sXT, sDMAOFF)
    for nm in ('PFIX0', 'PFIX1'):
        q = P(); q.label(nm)
        fix_dma(q, tq_shift=0, tmps=list(range(202, 212)))
        q(f's_branch {nm}_RET')
        ool.append(q)
    p(f'''
    s_mov_b32 s{sB0}, s{sB1}
    s_mov_b32 s{sB1}, s{sB2}
    s_mov_b32 s{sSTOFF}, {OOB}
    s_add_u32 s{sXT}, s{sXT}, {XSZ}
    ''')
    next_window(p)
    p(f's_mov_b32 s{sDMAOFF}, s{sB2}')
    srd(SO, 80, TOTAL)
    RCB = 144; A1 = 156; A2 = 158
    p(f'''
    v_lshlrev_b32 v209, 2, {v(n32)}
    v_lshlrev_b32 v210, 16, {v(hf)}
    v_sub_u32 v209, v210, v209
    ''')
    for i in range(6):
        p(f'''
        v_add_u32 v210, {672 - 128*i}, v209
        buffer_load_dword {v(RCB+2*i)}, v210, s[{S_RC}:{S_RC+3}], 0 offen
        v_mov_b32 {v(RCB+2*i+1)}, 0
        ''')
    p(f'''
    v_lshlrev_b32 v210, 1, {v(n32)}
    v_mov_b32 {v(A1+1)}, 0
    buffer_load_ushort {v(A1)}, v210, s[{S_W1}:{S_W1+3}], 0 offen
    buffer_load_ushort v180, v210, s[{S_W1}:{S_W1+3}], 0 offen offset:32
    s_lshl_b32 s{sT0}, s{sH}, 1
    v_lshl_add_u32 v211, {v(hf)}, 5, s{sT0}
    ''')
    for j in range(8):
        hid = (j & 3) + 8*(j >> 2)
        dst = (A2 + j//2) if j % 2 == 0 else (244 + j//2)
        p(f'buffer_load_ushort {v(dst)}, v211, s[{S_W2}:{S_W2+3}], 0 offen offset:{hid*8}')
    WR = 162
    p(f'''
    v_lshrrev_b32 v212, 3, {v(TID)}
    v_and_b32 v213, 7, {v(TID)}
    v_mul_u32_u24 v214, 192, v212
    v_mul_u32_u24 v215, 24, v213
    v_add_u32 v214, v214, v215
    v_add_u32 v215, 6144, v214
    v_add_u32 v216, 12288, v214
    ''')
    for k in range(3):
        p(f'buffer_load_dwordx4 {vt(WR+6*k,4)}, {v(214+k)}, s[{S_WO}:{S_WO+3}], 0 offen')
        p(f'buffer_load_dwordx2 {vt(WR+6*k+4,2)}, {v(214+k)}, s[{S_WO}:{S_WO+3}], 0 offen offset:16')
    p(f'''
    v_mov_b32 {v(ONA+1)}, 0
    v_mov_b32 {v(ONB+1)}, 0
    v_mov_b32 {v(PZ+1)}, 0
    v_mov_b32 v217, 0x3f80
    v_cmp_gt_u32 vcc, 32, {v(LN)}
    v_cndmask_b32_e64 {v(ONA)}, 0, v217, vcc
    v_cmp_le_u32 vcc, 24, {v(n32)}
    v_cndmask_b32_e64 {v(ONB)}, 0, {v(ONA)}, vcc
    v_mul_u32_u24 {v(XR0)}, {RS}, {v(n32)}
    v_lshl_add_u32 {v(XR0)}, {v(hf)}, 4, {v(XR0)}
    v_add_u32 {v(XR1)}, 32, {v(n32)}
    v_min_u32 v217, 49, {v(XR1)}
    v_min_u32 {v(XR1)}, 48, {v(XR1)}
    v_mul_u32_u24 {v(XR1)}, {RS}, {v(XR1)}
    v_lshl_add_u32 {v(XR1)}, {v(hf)}, 4, {v(XR1)}
    s_mul_i32 s{sT0}, s{sH}, 48
    s_add_u32 s{sT0}, s{sT0}, {OB0}
    v_mul_u32_u24 {v(OW)}, {RS}, {v(n32)}
    v_lshl_add_u32 {v(OW)}, {v(hf)}, 3, {v(OW)}
    v_add_u32 {v(OW)}, s{sT0}, {v(OW)}
    v_mul_u32_u24 v217, {RS}, v217
    v_lshl_add_u32 v217, {v(hf)}, 3, v217
    v_add_u32 {v(T0)}, s{sT0}, v217
    v_and_b32 v217, 15, {v(LN)}
    s_lshl_b32 s{sT0}, s{sH}, 4
    v_add_u32 v217, s{sT0}, v217
    v_min_u32 v217, 49, v217
    v_mul_u32_u24 {v(OR)}, {RS}, v217
    v_and_b32 v217, 48, {v(LN)}
    v_add_u32 {v(OR)}, {v(OR)}, v217
    v_add_u32 {v(OR)}, {OB0}, {v(OR)}
    v_lshlrev_b32 {v(WOA)}, 4, {v(LN)}
    v_add_u32 {v(WOA)}, {WO}, {v(WOA)}
    s_mov_b32 s{sXC}, 0
    s_mov_b32 s{sKP}, {XSZ}
    s_mov_b32 s{sKM}, {-2*XSZ}
    s_lshl_b32 s{sXTL}, s{sH}, 10
    s_add_u32 s{sXTL}, s{sXTL}, {2*XSZ}
    s_mov_b32 s{sDO}, {OSZ}
    ''')
    st_offsets(p, LN, list(range(217, 225)))
    p(f'''
    v_bfe_u32 v226, {v(LN)}, 2, 2
    v_lshl_add_u32 v226, {v(hf)}, 3, v226
    v_mul_u32_u24 v226, 576, v226
    v_and_b32 v227, 3, {v(LN)}
    v_bfe_u32 v228, {v(LN)}, 4, 1
    s_mul_i32 s{sT0}, s{sH}, 48
    s_add_u32 s{sT0}, s{sT0}, {STG}
    v_add_u32 v226, s{sT0}, v226
    v_and_b32 v229, 1, v227
    v_mul_u32_u24 v229, 24, v229
    v_lshrrev_b32 v230, 1, v227
    v_lshl_add_u32 v230, v228, 1, v230
    v_lshlrev_b32 v230, 3, v230
    v_add3_u32 v231, v226, v229, v230
    v_lshlrev_b32 v229, 5, v228
    v_lshlrev_b32 v230, 3, v227
    v_add3_u32 v232, v226, v229, v230
    ''')
    if STAMP: p('s_memtime s[88:89]')
    p(f'''
    s_waitcnt lgkmcnt(0)
    s_cmp_ge_u32 s{sH}, 2
    s_cselect_b32 s82, s83, s82
    s_bitcmp1_b32 s{sH}, 0
    s_cselect_b32 s{sT0}, 0, 16
    s_lshl_b32 s82, s82, s{sT0}
    s_and_b32 s82, s82, 0xffff0000
    v_mov_b32 v233, s82
    v_min_f32 v233, {fl(4.59375)}, v233
    v_max_f32 v233, {fl(-100.0)}, v233
    v_mul_f32 v233, {fl(LOG2E)}, v233
    v_exp_f32 v233, v233
    v_cmp_gt_u32 s[84:85], 32, {v(LN)}
    v_cvt_pk_bf16_f32 v233, 0, v233
    v_add_f32 v234, {fl(16.0)}, v233
    v_mul_f32 v234, {fl(LOG2E)}, v234
    v_add_f32 v234, {fl(-64.0)}, v234
    v_cmp_lt_f32 vcc, {fl(TAU_THR)}, v233
    v_mov_b32 v235, 0
    v_cndmask_b32 v234, v234, v235, vcc
    v_mul_f32 v233, {fl(LOG2E)}, v233
    v_mov_b32 {v(CQ)}, 1.0
    v_cndmask_b32_e64 {v(CQ)}, {v(CQ)}, v233, s[84:85]
    s_cmp_lg_u64 vcc, 0
    s_cselect_b32 s{sMODE}, 1, 0
    ''')
    SHV = 234
    p(f'v_lshl_or_b32 {v(A1)}, v180, 16, {v(A1)}')
    for k in range(4): p(f'v_lshl_or_b32 {v(A2+k)}, {v(244+k)}, 16, {v(A2+k)}')
    H, Z = 0, 16
    ZS = 72
    for i in range(6):
        p(mf32k8(H, A1, RCB+2*i, None))
        for k in range(4): p(f'v_cvt_pk_bf16_f32 {v(32+k)}, {v(H+2*k)}, {v(H+2*k+1)}')
        for k in range(4): p(f'v_pk_max_i16 {v(32+k)}, {v(32+k)}, 0')
        p(mf32(Z, A2, 32, None))
        p(f'v_mov_b32 {v(ZS+i)}, {v(Z)}')
    p(f'v_cmp_lt_u32 vcc, 31, {v(LN)}')
    for k in range(3):
        a = ZS + 2*k
        p(f'''
        v_cndmask_b32 {v(a)}, {v(a)}, {v(a+1)}, vcc
        v_cvt_pk_bf16_f32 {v(a)}, 0, {v(a)}
        v_mul_f32 {v(a)}, {fl(-LOG2E)}, {v(a)}
        v_exp_f32 {v(a)}, {v(a)}
        v_add_f32 {v(a)}, 1.0, {v(a)}
        v_rcp_f32 {v(a)}, {v(a)}
        v_cvt_pk_bf16_f32 {v(a)}, 0, {v(a)}
        v_mul_f32 {v(a)}, {fl(16.0*LOG2E)}, {v(a)}
        v_sub_f32 {v(a)}, {v(a)}, {v(SHV)}
        ''')
    ONES = 44
    p(f'v_mov_b32 {v(ONES)}, 0x3f803f80')
    for k in range(3):
        sm = 36 + 2*k
        p(f'v_mov_b32 {v(sm)}, 0')
        for d in range(6): p(f'v_dot2_f32_bf16 {v(sm)}, {v(WR+6*k+d)}, {v(ONES)}, {v(sm)}')
        p(f'''
        v_add_f32_dpp {v(sm+1)}, {v(sm)}, {v(sm)} quad_perm:[1,0,3,2] row_mask:0xf bank_mask:0xf
        v_add_f32_dpp {v(sm)}, {v(sm+1)}, {v(sm+1)} quad_perm:[2,3,0,1] row_mask:0xf bank_mask:0xf
        v_add_f32_dpp {v(sm+1)}, {v(sm)}, {v(sm)} row_half_mirror row_mask:0xf bank_mask:0xf
        v_mul_f32 {v(sm)}, {fl(-1.0/96.0)}, {v(sm+1)}
        ''')
        for d in range(6):
            w = WR+6*k+d
            p(f'''
            v_lshlrev_b32 v42, 16, {v(w)}
            v_and_b32 v43, 0xffff0000, {v(w)}
            v_add_f32 v42, v42, {v(sm)}
            v_add_f32 v43, v43, {v(sm)}
            v_cvt_pk_bf16_f32 {v(w)}, v42, v43
            ''')
    p(f'''
    v_lshrrev_b32 v42, 3, v212
    v_lshlrev_b32 v42, 8, v42
    v_and_b32 v43, 7, v212
    v_lshl_add_u32 v42, v43, 1, v42
    v_lshl_add_u32 v42, v213, 5, v42
    v_add_u32 v78, {WO}, v42
    ''')
    WOSC = 78
    if STAMP: p('s_memtime s[90:91]')
    p('''
    s_waitcnt vmcnt(0)
    s_barrier
    ''')
    if STAMP: p('s_memtime s[92:93]')
    for s in range(6):
        for u in range(2):
            off = (16*s + 4*u) * 576
            p(f'ds_read_b64_tr_b16 {vt(WQ+4*s+2*u,2)}, v231 offset:{off}')
            p(f'ds_read_b64_tr_b16 {vt(WK+4*s+2*u,2)}, v231 offset:{off+192}')
            p(f'ds_read_b64_tr_b16 {vt(WV+4*s+2*u,2)}, v232 offset:{off+384}')
    for s in range(6): p(f'ds_read_b128 {vt(X+4*s,4)}, {v(XR0)} offset:{32*s}')
    p(f'''
    v_cmp_gt_u32 vcc, 24, {v(n32)}
    v_cndmask_b32_e64 v247, 0, -1, vcc
    ''')
    nmask = 72 if MASKQK else 24
    for r in range(72 - nmask, 72): p(f'v_and_b32 {v(r)}, v247, {v(r)}')
    p('''
    s_waitcnt lgkmcnt(0)
    s_barrier
    ''')
    if STAMP: p('s_memtime s[94:95]')
    p(f'''
    s_mul_i32 s{sT0}, s{sH}, 768
    s_add_u32 s{sT0}, s{sT0}, {TAB}
    v_lshl_add_u32 v247, {v(LN)}, 2, s{sT0}
    ''')
    for k in range(3): p(f'ds_write_b32 v247, {v(ZS+2*k)} offset:{256*k}')
    for k in range(3):
        for e in range(12):
            off = k*6144 + (e % 6)*1024 + (e // 6)*16
            w = WR + 6*k + e//2
            if e % 2 == 0: p(f'ds_write_b16 {v(WOSC)}, {v(w)} offset:{off}')
            else: p(f'ds_write_b16_d16_hi {v(WOSC)}, {v(w)} offset:{off}')
    bias_gather(p, LN, list(range(226, 236)))
    p(f'v_mov_b32 {v(B10+9)}, 0')
    p(f'v_mov_b32 {v(B11+9)}, 0')
    if STAMP:
        p(f'''
        s_load_dwordx2 s[96:97], s[0:1], 88
        s_waitcnt lgkmcnt(0)
        s_mov_b32 s{S_WS}, s96
        s_and_b32 s{S_WS+1}, s97, 0xffff
        s_mov_b32 s{S_WS+2}, {64<<20}
        s_mov_b32 s{S_WS+3}, 0x00020000
        s_lshl_b32 s97, s2, 2
        s_add_u32 s97, s97, s{sH}
        s_lshl_b32 s97, s97, 9
        v_mov_b32 v252, s97
        buffer_store_dword v250, v252, s[{S_WS}:{S_WS+3}], 0 offen offset:0
        buffer_store_dword v251, v252, s[{S_WS}:{S_WS+3}], 0 offen offset:4
        ''')
        for k in range(5):
            p(f'v_mov_b32 v250, s{86+2*k}')
            p(f'buffer_store_dword v250, v252, s[{S_WS}:{S_WS+3}], 0 offen offset:{480+4*k}')
        stamp(p, 0, 8, 250, 251)

MASKQK = True
LITE = False
ALIGN = True
DUMP = None
def dump_all(p):
    p(f"""
    s_waitcnt vmcnt(0) lgkmcnt(0)
    s_nop 15
    s_barrier
    s_cmp_lg_u32 s2, 0
    s_cbranch_scc1 L_END
    s_load_dwordx2 s[96:97], s[0:1], 88
    s_waitcnt lgkmcnt(0)
    s_mov_b32 s88, s96
    s_and_b32 s89, s97, 0xffff
    s_mov_b32 s90, {64<<20}
    s_mov_b32 s91, 0x00020000
    s_lshl_b32 s92, s{sH}, 16
    v_mbcnt_lo_u32_b32 v255, -1, 0
    v_mbcnt_hi_u32_b32 v255, -1, v255
    v_lshlrev_b32 v255, 2, v255
    v_add_u32 v255, s92, v255
    """)
    for r in range(255):
        p(f's_mov_b32 s93, {r*256}')
        p(f'buffer_store_dword v{r}, v255, s[88:91], s93 offen')
    p(f"""
    s_waitcnt vmcnt(0)
    v_mbcnt_lo_u32_b32 v254, -1, 0
    v_mbcnt_hi_u32_b32 v254, -1, v254
    s_lshl_b32 s92, s{sH}, 6
    v_add_u32 v254, s92, v254
    v_lshlrev_b32 v254, 4, v254
    """)
    for k in range(20):
        p(f"""
        ds_read_b128 v[248:251], v254
        s_waitcnt lgkmcnt(0)
        s_mov_b32 s93, {1<<20}
        buffer_store_dwordx4 v[248:251], v254, s[88:91], s93 offen
        s_waitcnt vmcnt(0)
        v_add_u32 v254, 4096, v254
        """)
    p('s_branch L_END')

OW1 = T0

def fix_dma(q, tq_shift, tmps):
    ln = tmps[0]
    lane_id(q, ln)
    q(f'''
    s_lshl_b32 s{sT0}, s{sH}, 6
    v_add_u32 {v(ln)}, s{sT0}, {v(ln)}
    s_lshr_b32 s{sT4}, s{sTQ}, {tq_shift}
    s_and_b32 s{sT4}, s{sT4}, 3
    s_cmp_lg_u32 s{sT4}, 0
    s_cselect_b32 s{sT5}, s{sB2}, 0
    s_cselect_b32 s{sDMAOFF}, 0, s{sDMAOFF}
    ''')
    wrap_consts(q, sT4)
    dma_offsets(q, ln, tmps[1:], wrap=sT5)

def fix_st(q, tmps):
    ln = tmps[0]
    lane_id(q, ln)
    q(f'''
    s_lshr_b32 s{sT4}, s{sTQ}, 6
    s_and_b32 s{sT4}, s{sT4}, 3
    s_cmp_lg_u32 s{sT4}, 0
    s_cselect_b32 s{sT5}, s{sSTOFF}, 0
    s_cselect_b32 s{sSTOFF}, 0, s{sSTOFF}
    ''')
    wrap_consts(q, sT4)
    st_offsets(q, ln, tmps[1:], wrap=sT5)

def mask_apply(q):
    KF = [V0, V0+2]; QF = [V0+4, V0+6]
    ln, n32, cc, t, ti, tj, a, b, km, ff, one = Q0, Q0+1, Q0+2, Q0+3, Q0+4, Q0+5, Q0+6, Q0+7, Q0+8, Q0+9, Q0+10
    lane_id(q, ln)
    q(f'''
    v_and_b32 {v(n32)}, 31, {v(ln)}
    v_mov_b32 {v(cc)}, 0xC310C310
    v_mov_b32 {v(t)}, 0xBE8ABE8A
    v_cmp_lt_u32 vcc, 31, {v(ln)}
    v_cndmask_b32 {v(cc)}, {v(cc)}, {v(t)}, vcc
    v_mov_b32 {v(ff)}, 0xffff
    v_mov_b32 {v(one)}, 0x3f803f80
    s_lshr_b32 s{sT0}, s{sT4}, 1
    s_and_b32 s{sT1}, s{sT4}, 1
    ''')
    for T in range(2):
        q(f'''
        v_add_u32 {v(t)}, {32*T}, {v(n32)}
        v_min_u32 {v(t)}, 48, {v(t)}
        v_mul_u32_u24 {v(ti)}, 37, {v(t)}
        v_lshrrev_b32 {v(ti)}, 8, {v(ti)}
        v_mad_i32_i24 {v(tj)}, {v(ti)}, -7, {v(t)}
        v_cmp_le_u32 vcc, 4, {v(ti)}
        v_cndmask_b32_e64 {v(a)}, 0, 1, vcc
        v_and_b32 {v(a)}, s{sT0}, {v(a)}
        v_cmp_le_u32 vcc, 4, {v(tj)}
        v_cndmask_b32_e64 {v(b)}, 0, 16, vcc
        v_mul_u32_u24 {v(b)}, s{sT1}, {v(b)}
        v_lshlrev_b32 {v(km)}, {v(b)}, {v(ff)}
        v_cmp_eq_u32 vcc, 0, {v(a)}
        v_cndmask_b32_e64 {v(a)}, 0, {v(km)}, vcc
        v_cndmask_b32_e64 {v(b)}, {v(km)}, 0, vcc
        v_and_b32 {v(KF[T])}, {v(one)}, {v(a)}
        v_and_b32 {v(KF[T]+1)}, {v(one)}, {v(b)}
        v_bfi_b32 {v(QF[T])}, {v(a)}, 0, {v(cc)}
        v_bfi_b32 {v(QF[T]+1)}, {v(b)}, 0, {v(cc)}
        ''')
    for qt in range(2):
        for kt in range(2):
            d = A if kt == 0 else B
            q(mf32k8(d, KF[kt], QF[qt], BIAS[(kt, qt)]))
        q('s_nop 15')
        for r in range(16): q(f'v_mov_b32 {v(BIAS[(0,qt)]+r)}, {v(A+r)}')
        for r in range(9): q(f'v_mov_b32 {v(BIAS[(1,qt)]+r)}, {v(B+r)}')
        q('s_nop 7')

def fix_block(name, do_attn):
    q = P(); q.label(name)
    if do_attn:
        q(f'''
        s_and_b32 s{sT0}, s{sTQ}, 0xf
        s_cbranch_scc0 {name}_ND
        ''')
        fix_dma(q, 0, list(range(A, A+10)))
        q.label(f'{name}_ND')
    q(f'''
    s_and_b32 s{sT0}, s{sTQ}, 0x3c0
    s_cbranch_scc0 {name}_NS
    ''')
    fix_st(q, list(range(A, A+10)))
    q.label(f'{name}_NS')
    if do_attn:
        q(f'''
        s_lshr_b32 s{sT4}, s{sTQ}, 4
        s_and_b32 s{sT4}, s{sT4}, 3
        s_cmp_eq_u32 s{sT4}, s{sBST}
        s_cbranch_scc1 {name}_NB
        s_cmp_eq_u32 s{sBST}, 0
        s_cbranch_scc1 {name}_NR
        ''')
        lane_id(q, C)
        bias_gather(q, C, list(range(C+1, C+12)))
        q('s_waitcnt lgkmcnt(0)')
        q.label(f'{name}_NR')
        q(f'''
        s_mov_b32 s{sBST}, s{sT4}
        s_cmp_eq_u32 s{sT4}, 0
        s_cbranch_scc1 {name}_NB
        ''')
        mask_apply(q)
        q.label(f'{name}_NB')
    q(f's_branch {name}_RET')
    return q

def proj_part(p):
    PACC = Q0
    OF = C
    WFS = [B, B+4, B+8, B+12, V0, V0+4, V1, C+12]
    SS = V0
    tt, uu, ww = 172, 173, 174
    for s in range(3): p(f'ds_read_b128 {vt(OF+4*s,4)}, {v(OR)} offset:{64*s}')
    k = 0
    for tau in range(6):
        for s in range(3):
            w = WFS[k % len(WFS)]; k += 1
            p(f'ds_read_b128 {vt(w,4)}, {v(WOA)} offset:{(s*6+tau)*1024}')
            p(mf16(PACC+4*tau, OF+4*s, w, None if s == 0 else PACC+4*tau))
    for r in range(4):
        p(f'v_mul_f32 {v(SS+r)}, {v(PACC+r)}, {v(PACC+r)}')
        for tau in range(1, 6): p(f'v_fmac_f32 {v(SS+r)}, {v(PACC+4*tau+r)}, {v(PACC+4*tau+r)}')
    p(f'''
    v_add_f32_dpp {v(tt)}, {v(SS)}, {v(SS)} row_ror:8 row_mask:0xf bank_mask:0x3
    v_add_f32_dpp {v(tt)}, {v(SS+1)}, {v(SS+1)} row_ror:8 row_mask:0xf bank_mask:0xc
    v_add_f32_dpp {v(uu)}, {v(SS+2)}, {v(SS+2)} row_ror:8 row_mask:0xf bank_mask:0x3
    v_add_f32_dpp {v(uu)}, {v(SS+3)}, {v(SS+3)} row_ror:8 row_mask:0xf bank_mask:0xc
    v_add_f32_dpp {v(ww)}, {v(tt)}, {v(tt)} row_half_mirror row_mask:0xf bank_mask:0x5
    v_add_f32_dpp {v(ww)}, {v(uu)}, {v(uu)} row_half_mirror row_mask:0xf bank_mask:0xa
    v_add_f32_dpp {v(tt)}, {v(ww)}, {v(ww)} quad_perm:[1,0,3,2] row_mask:0xf bank_mask:0xf
    v_add_f32_dpp {v(ww)}, {v(tt)}, {v(tt)} quad_perm:[2,3,0,1] row_mask:0xf bank_mask:0xf
    v_add_f32 {v(ww)}, {fl(96e-5)}, {v(ww)}
    v_rsq_f32 {v(ww)}, {v(ww)}
    v_mul_f32 {v(ww)}, {fl(math.sqrt(96.0))}, {v(ww)}
    ''')
    for r, ln in enumerate((0, 8, 4, 12)):
        p(f'v_mov_b32_dpp {v(SS+r)}, {v(ww)} row_newbcast:{ln} row_mask:0xf bank_mask:0xf')
    for r in range(4):
        for tau in range(6): p(f'v_mul_f32 {v(PACC+4*tau+r)}, {v(PACC+4*tau+r)}, {v(SS+r)}')
        o = 176 if r % 2 == 0 else 172
        for i in range(3): p(f'v_cvt_pk_bf16_f32 {v(o+i)}, {v(PACC+8*i+r)}, {v(PACC+8*i+4+r)}')
        p(f'buffer_store_dwordx3 {vt(o,3)}, {v(ST[r])}, s[{SO}:{SO+3}], s{sSTOFF} offen')

def post_qk(p, qa, ka, T):
    p(f'v_fma_f32 {v(T1)}, {v(qa)}, {v(qa)}, s{sEPSH}')
    for r in range(1, 12): p(f'v_fmac_f32 {v(T1)}, {v(qa+r)}, {v(qa+r)}')
    p(f'v_fma_f32 {v(T2)}, {v(ka)}, {v(ka)}, s{sEPSH}')
    for r in range(1, 12): p(f'v_fmac_f32 {v(T2)}, {v(ka+r)}, {v(ka+r)}')
    p(f'''
    v_permlane32_swap_b32 {v(T1)}, {v(T2)}
    v_add_f32 {v(T1)}, {v(T1)}, {v(T2)}
    v_rsq_f32 {v(T1)}, {v(T1)}
    v_mul_f32 {v(T1)}, {v(T1)}, {v(CQ)}
    v_mov_b32 {v(T2)}, {v(T1)}
    v_permlane32_swap_b32 {v(T1)}, {v(T2)}
    ''')
    for r in range(12): p(f'v_mul_f32 {v(qa+r)}, {v(qa+r)}, {v(T1)}')
    for i in range(6): p(f'v_cvt_pk_bf16_f32 {v(QOP[T]+i)}, {v(qa+2*i)}, {v(qa+2*i+1)}')
    for r in range(12): p(f'v_mul_f32 {v(ka+r)}, {v(ka+r)}, {v(T2)}')
    for i in range(6): p(f'v_cvt_pk_bf16_f32 {v(KOP[T]+i)}, {v(ka+2*i)}, {v(ka+2*i+1)}')

def xread(p, xr):
    for s in range(6): p(f'ds_read_b128 {vt(X+4*s,4)}, {v(xr)} offset:{32*s}')

def attn_part(p, slowmax):
    for s in range(6): p(mf32(A, WQ+4*s, X+4*s, None if s == 0 else A))
    for s in range(6): p(mf32(B, WK+4*s, X+4*s, None if s == 0 else B))
    xread(p, XR1)
    for s in range(6): p(mf32(C, WQ+4*s, X+4*s, None if s == 0 else C))
    post_qk(p, A, B, 0)
    for s in range(6): p(mf32(A, WK+4*s, X+4*s, None if s == 0 else A))
    xread(p, XR0)
    p(mf32k8(B, ONA, ONB, None))
    for s in range(6): p(mf32(B, X+4*s, WV+4*s, B))
    post_qk(p, C, A, 1)
    for i in range(8): p(f'v_cvt_pk_bf16_f32 {v(V0+i)}, {v(B+2*i)}, {v(B+2*i+1)}')
    xread(p, XR1)
    p(mf32k8(C, ONA, ONB, None))
    for s in range(6): p(mf32(C, X+4*s, WV+4*s, C))
    p(f'''
    v_add_u32 {v(XR0)}, s{sXD}, {v(XR0)}
    v_add_u32 {v(XR1)}, s{sXD}, {v(XR1)}
    ''')
    DREG = {(0, 0): A, (1, 0): B, (0, 1): C, (1, 1): X}
    def smm(qt):
        for kt in range(2):
            d = DREG[(kt, qt)]
            p(mf32(d, KOP[kt], QOP[qt], BIAS[(kt, qt)]))
            p(mf32k8(d, KOP[kt]+4, QOP[qt]+4, d))
    smm(0)
    for i in range(6): p(f'v_cvt_pk_bf16_f32 {v(V1+i)}, {v(C+2*i)}, {v(C+2*i+1)}')
    smm(1)
    POPS = {0: [A, A+4, B+12], 1: [C, C+4, X]}
    OACC = A + 8
    OPK = {0: A, 1: C}
    for qt in range(2):
        d0, d1 = DREG[(0, qt)], DREG[(1, qt)]
        regs = [d0+r for r in range(16)] + [d1+r for r in range(9)]
        if slowmax:
            m, t = T1, T2
            p(f'v_max3_f32 {v(m)}, {v(regs[0])}, {v(regs[1])}, {v(regs[2])}')
            for i in range(3, 25, 2): p(f'v_max3_f32 {v(m)}, {v(m)}, {v(regs[i])}, {v(regs[i+1])}')
            p(f'''
            v_mov_b32 {v(t)}, {v(m)}
            v_permlane32_swap_b32 {v(m)}, {v(t)}
            v_max_f32 {v(m)}, {v(m)}, {v(t)}
            ''')
            for r in regs: p(f'v_sub_f32 {v(r)}, {v(r)}, {v(m)}')
        for r in regs: p(f'v_exp_f32 {v(r)}, {v(r)}')
        po = POPS[qt]
        for i in range(8): p(f'v_cvt_pk_bf16_f32 {v(po[i//4] + i%4)}, {v(d0+2*i)}, {v(d0+2*i+1)}')
        p(f'v_cvt_pk_bf16_f32 {v(PZ)}, {v(d1+8)}, 0')
        for i in range(4): p(f'v_cvt_pk_bf16_f32 {v(po[2] + i)}, {v(d1+2*i)}, {v(d1+2*i+1)}')
        o = OACC
        p(mf32(o, V0, po[0], None))
        p(mf32(o, V0+4, po[1], o))
        p(mf32(o, V1, po[2], o))
        p(mf32k8(o, V1+4, PZ, o))
        rl = T1 if not slowmax else T1
        p(f'v_rcp_f32 {v(rl)}, {v(o+12)}')
        for r in range(12): p(f'v_mul_f32 {v(o+r)}, {v(o+r)}, {v(rl)}')
        pk = OPK[qt]
        for i in range(6): p(f'v_cvt_pk_bf16_f32 {v(pk+i)}, {v(o+2*i)}, {v(o+2*i+1)}')
        ow = OW if qt == 0 else OW1
        for i in range(3): p(f'ds_write_b64 {v(ow)}, {vt(pk+2*i,2)} offset:{16*i}')
    p(f'''
    v_add_u32 {v(OW)}, s{sDO}, {v(OW)}
    v_add_u32 {v(OW1)}, s{sDO}, {v(OW1)}
    ''')
    xread(p, XR0)

def sched(items, name=''):
    if not SCHED: return items
    tr = []
    out, t = schedule(items, trace=tr)
    if 'trace' in sys.argv and name == 'F1':
        with open('trace.txt', 'w') as f:
            for st, stall, tx in tr: f.write(f'{st:5d} {("+%d" % stall) if stall else "":>5s} {tx}\n')
    return out

def body(p, name, do_attn, slowmax, ool):
    p(f'''
    s_cmp_lg_u32 s{sTQ}, 0
    s_cbranch_scc1 {name}_FIX
    ''')
    p.label(f'{name}_FIX_RET')
    ool.append(fix_block(f'{name}_FIX', do_attn))
    main = P()
    if do_attn:
        dma_issue(main, sXT, sDMAOFF)
        main(f'''
        s_cmp_eq_u32 s{sXC}, {2*XSZ}
        s_cselect_b32 s{sXD}, s{sKM}, s{sKP}
        s_add_u32 s{sXC}, s{sXC}, s{sXD}
        s_cmp_ge_u32 s{sXT}, s{sXTL}
        s_cselect_b32 s{sT3}, s{sKM}, s{sKP}
        s_add_u32 s{sXT}, s{sXT}, s{sT3}
        ''')
    main(f'v_add_u32 {v(OR)}, s{sDO}, {v(OR)}')
    proj_part(main)
    if do_attn:
        attn_part(main, slowmax)
        main(f'''
        s_mov_b32 s{sSTOFF}, s{sB0}
        s_mov_b32 s{sB0}, s{sB1}
        s_mov_b32 s{sB1}, s{sB2}
        s_add_u32 s{sI}, s{sI}, 1
        ''')
        next_window(main)
        main(f'''
        s_add_u32 s{sT2}, s{sI}, 2
        s_cmp_lt_u32 s{sT2}, s{sCNT}
        s_cselect_b32 s{sDMAOFF}, s{sB2}, {OOB}
        s_cselect_b32 s{sT0}, -1, 0x3fc
        s_and_b32 s{sTQ}, s{sTQ}, s{sT0}
        ''')
    items = main.items
    if do_attn:
        items.append(Ins(f's_sub_u32 s{sDO}, 0, s{sDO}'))
    sch = sched(items, name)
    if PRIO is not None and do_attn:
        a, b = PRIO
        out = [Ins(f's_setprio {a}')]
        done = False
        for it in sch:
            if not done and it.mn == 'v_mfma_f32_32x32x8_bf16':
                out.append(Ins(f's_setprio {b}')); done = True
            out.append(it)
        sch = out
    p.extend(sch)
    if STAMP and not (LITE and do_attn):
        if not do_attn: p(f's_add_u32 s{sI}, s{sI}, 1')
        p(f's_lshl_b32 s95, s{sI}, 4')
        stamp(p, 's95', 0, A, A+1)
    if do_attn:
        nst = 4 + (1 if (STAMP and not LITE) else 0)
        p(f's_waitcnt vmcnt({nst}) lgkmcnt(0)')
        if DUMP == 'it0' and not slowmax: dump_all(p)
        p('s_barrier')
        if STAMP and not LITE: stamp(p, 's95', 4, A, A+1)
    elif STAMP:
        p('s_waitcnt vmcnt(0)')
        stamp(p, 's95', 4, A, A+1)
        p(f'''
        s_memrealtime s[96:97]
        s_waitcnt lgkmcnt(0)
        v_mov_b32 {v(A)}, s96
        s_lshl_b32 s97, s2, 2
        s_add_u32 s97, s97, s{sH}
        s_lshl_b32 s97, s97, 9
        v_mov_b32 {v(A+1)}, s97
        buffer_store_dword {v(A)}, {v(A+1)}, s[12:15], 0 offen offset:12
        ''')

def build():
    p = P()
    ool = []
    prologue(p, ool)
    if DUMP == 'pro': dump_all(p)
    p(f'''
    s_cmp_lg_u32 s{sMODE}, 0
    s_cbranch_scc1 S_LOOP
    ''')
    for mode, pre in ((False, 'F'), (True, 'S')):
        p.label(pre + '_LOOP')
        body(p, pre + '1', True, mode, ool)
        p(f'''
        s_cmp_lt_u32 s{sI}, s{sCNT}
        s_cbranch_scc1 {pre}_LOOP
        ''')
        if not mode: p('s_branch L_TAIL')
    p.label('L_TAIL')
    if STAMP and LITE: stamp(p, 0, 16, A, A+1)
    body(p, 'T', False, False, ool)
    p.label('L_END')
    p('s_endpgm')
    items = p.items
    for q in ool:
        its = q.items
        items.append(its[0])
        items.append(Ins('s_nop 15'))
        items.append(Ins('s_waitcnt lgkmcnt(0)'))
        items.extend(its[1:-1])
        items.append(Ins('s_nop 15'))
        items.append(its[-1])
    items = insert_waits(items)
    items, hist, nn = insert_hazard_nops(items)
    if ALIGN:
        for lab in ('F_LOOP', 'S_LOOP'):
            items = align_pass(items, lab, lambda it, lab=lab: it.text.startswith('s_cbranch_scc1 ' + lab))
    return items, nn

def emit(path):
    items, nn = build()
    HEADER = open('standalone__window_attn_swin_v2__vision.s.ref').read().split('; @launch')[0]
    hdr = [l for l in HEADER.split('\n') if l.startswith(';')]
    txt = '\n'.join(hdr) + '\n'
    txt += f'; @launch grid=({NWG},1,1) block=(256,1,1) lds={LDS_BYTES}\n'
    txt += '.amdgcn_target "amdgcn-amd-amdhsa--gfx950"\n.text\n'
    txt += f'.globl {NAME}\n.p2align 8\n.type {NAME},@function\n{NAME}:\n'
    for it in items:
        if isinstance(it, Label):
            if it.name in ('F_LOOP', 'S_LOOP') and ALIGN: txt += '.p2align 3\n'
            txt += it.text + '\n'
        else: txt += '    ' + it.text + '\n'
    txt += f'''.section .rodata,"a"
.p2align 6
.amdhsa_kernel {NAME}
  .amdhsa_next_free_vgpr 256
  .amdhsa_next_free_sgpr 102
  .amdhsa_accum_offset 256
  .amdhsa_group_segment_fixed_size 0
  .amdhsa_kernarg_size 96
  .amdhsa_user_sgpr_count 2
  .amdhsa_user_sgpr_kernarg_segment_ptr 1
  .amdhsa_system_sgpr_workgroup_id_x 1
.end_amdhsa_kernel
'''
    open(path, 'w').write(txt)
    n = sum(1 for it in items if isinstance(it, Ins))
    print(f'wrote {path}: {n} instructions, {nn} hazard nop states')

if __name__ == '__main__':
    if 'nosched' in sys.argv: SCHED = False
    if 'stamp' in sys.argv: STAMP = True
    if 'lite' in sys.argv: STAMP = True; LITE = True
    if 'nomaskqk' in sys.argv: MASKQK = False
    if 'noalign' in sys.argv: ALIGN = False
    for a in sys.argv:
        if a.startswith('prio='): PRIO = tuple(int(x) for x in a[5:].split(','))
    for a in sys.argv:
        if a.startswith('dump='): DUMP = a[5:]
    emit(sys.argv[1])
```

```python
import re

VRE = re.compile(r'^v(\d+)$|^v\[(\d+):(\d+)\]$')
ARE = re.compile(r'^a(\d+)$|^a\[(\d+):(\d+)\]$')
SRE = re.compile(r'^s(\d+)$|^s\[(\d+):(\d+)\]$')

def split_ops(s):
    out, depth, cur = [], 0, ''
    for ch in s:
        if ch == '[': depth += 1
        if ch == ']': depth -= 1
        if ch == ',' and depth == 0:
            out.append(cur.strip()); cur = ''
        else:
            cur += ch
    if cur.strip(): out.append(cur.strip())
    return out

def vset(op):
    op = op.strip()
    neg = op.lstrip('-')
    if neg.startswith('abs(') or neg.startswith('|'):
        neg = neg.replace('abs(', '').replace(')', '').replace('|', '')
    m = VRE.match(neg)
    if not m:
        m = ARE.match(neg)
        if not m: return set()
        if m.group(1) is not None: return {256 + int(m.group(1))}
        return set(range(256 + int(m.group(2)), 256 + int(m.group(3)) + 1))
    if m.group(1) is not None: return {int(m.group(1))}
    return set(range(int(m.group(2)), int(m.group(3)) + 1))

def sset(op):
    op = op.strip().lstrip('-')
    if op == 'vcc': return {'vcc'}
    if op == 'exec': return {'exec'}
    if op == 'm0': return {'m0'}
    if op == 'scc': return {'scc'}
    m = SRE.match(op)
    if not m: return set()
    if m.group(1) is not None: return {int(m.group(1))}
    return set(range(int(m.group(2)), int(m.group(3)) + 1))

TRANS = ('v_exp_f32', 'v_log_f32', 'v_rcp_f32', 'v_rsq_f32', 'v_sqrt_f32', 'v_sin_f32', 'v_cos_f32')

class Ins:
    __slots__ = ('text', 'mn', 'kind', 'vr', 'vw', 'sr', 'sw', 'dpp', 'passes', 'srcc', 'srcab', 'wide', 'tag', 'cmt', 'order_class', 'idx', 'pk')
    def __init__(self, text, tag=None):
        self.text = text.strip()
        self.tag = tag
        self.idx = -1
        t = self.text.split(';')[0].strip()
        parts = t.split(None, 1)
        mn = parts[0]; self.mn = mn
        rest = parts[1] if len(parts) > 1 else ''
        ops = split_ops(rest)
        mods = ''
        if ops:
            last = ops[-1].split(None, 1)
            ops[-1] = last[0]
            mods = last[1] if len(last) > 1 else ''
        self.vr, self.vw, self.sr, self.sw = set(), set(), set(), set()
        self.dpp = False; self.passes = 0; self.srcc = set(); self.srcab = set(); self.wide = False
        self.pk = mn.startswith(('v_pk_mul_f32', 'v_pk_fma_f32', 'v_pk_add_f32', 'v_dot2'))
        def rd(o):
            self.vr |= vset(o); self.sr |= sset(o)
        def wr(o):
            self.vw |= vset(o); self.sw |= sset(o)
        if mn.startswith('v_mfma'):
            self.kind = 'mfma'
            self.passes = 4 if '16x16' in mn else 8
            wr(ops[0]); rd(ops[1]); rd(ops[2]); rd(ops[3])
            self.srcab = vset(ops[1]) | vset(ops[2]); self.srcc = vset(ops[3])
        elif mn.startswith('v_permlane') and 'swap' in mn:
            self.kind = 'permlane'
            wr(ops[0]); wr(ops[1]); rd(ops[0]); rd(ops[1])
        elif mn.startswith('v_'):
            base = mn.replace('_e32', '').replace('_e64', '').replace('_dpp', '')
            self.kind = 'trans' if base in TRANS else 'valu'
            self.dpp = ('row_' in mods or 'quad_perm' in mods or 'row_' in rest or 'quad_perm' in rest)
            wr(ops[0])
            if mn.startswith('v_pk_') and 'f32' in mn:
                ns_ = len(ops) - 1
                m1 = re.search(r'op_sel:\[([01,]+)\]', rest); m2 = re.search(r'op_sel_hi:\[([01,]+)\]', rest)
                lo = [int(x) for x in m1.group(1).split(',')] if m1 else [0] * ns_
                hi = [int(x) for x in m2.group(1).split(',')] if m2 else [1] * ns_
                for k_, o in enumerate(ops[1:]):
                    regs = sorted(vset(o))
                    if len(regs) == 2:
                        self.vr |= {regs[lo[k_]], regs[hi[k_]]}
                    else: rd(o)
            else:
                for o in ops[1:]: rd(o)
            if base.startswith('v_fmac') or base.startswith('v_dot2c'): rd(ops[0])
            if self.dpp:
                m = re.search(r'bank_mask:(0x[0-9a-f]+)', rest); m2 = re.search(r'row_mask:(0x[0-9a-f]+)', rest)
                if (m and int(m.group(1), 16) != 0xf) or (m2 and int(m2.group(1), 16) != 0xf): rd(ops[0])
            if base == 'v_cndmask_b32' and len(ops) == 3: self.sr.add('vcc')
            if base in ('v_readfirstlane_b32', 'v_readlane_b32'): self.kind = 'readlane'
            self.sr.add('exec')
        elif mn.startswith('ds_read') or mn.startswith('ds_bpermute') or mn.startswith('ds_swizzle'):
            self.kind = 'dsr'
            wr(ops[0])
            for o in ops[1:]: rd(o)
            if 'd16' in mn: rd(ops[0])
        elif mn.startswith('ds_write'):
            self.kind = 'dsw'
            for o in ops: rd(o)
        elif mn.startswith('buffer_load') or mn.startswith('global_load'):
            if re.search(r'\blds\b', rest):
                self.kind = 'dma'
                for o in ops: rd(o)
                self.sr.add('m0')
            else:
                self.kind = 'vload'
                wr(ops[0])
                for o in ops[1:]: rd(o)
                if 'd16' in mn: rd(ops[0])
        elif mn.startswith('buffer_store') or mn.startswith('global_store') or mn.startswith('buffer_atomic') or mn.startswith('global_atomic'):
            self.kind = 'vstore'
            for o in ops: rd(o)
            self.wide = ('x3' in mn or 'x4' in mn)
            if self.wide:
                self.srcc = vset(ops[0]) if mn.startswith('buffer') else vset(ops[1])
        elif mn == 's_waitcnt': self.kind = 'waitcnt'
        elif mn == 's_barrier': self.kind = 'barrier'
        elif mn == 's_nop': self.kind = 'nop'
        elif mn.startswith('s_cbranch') or mn == 's_branch' or mn == 's_endpgm' or mn == 's_setprio':
            self.kind = 'branch' if mn != 's_setprio' else 'salu'
            if 'scc' in mn: self.sr.add('scc')
            if 'vcc' in mn: self.sr.add('vcc')
            if 'exec' in mn: self.sr.add('exec')
        elif mn.startswith('s_load') or mn.startswith('s_memtime') or mn.startswith('s_memrealtime'):
            self.kind = 'smem'
            wr(ops[0])
            for o in ops[1:]: rd(o)
        elif mn.startswith('s_'):
            self.kind = 'salu'
            if mn.startswith('s_getreg'):
                wr(ops[0])
            elif mn.startswith('s_cmp') or mn.startswith('s_bitcmp'):
                for o in ops: rd(o)
                self.sw.add('scc')
            else:
                wr(ops[0])
                for o in ops[1:]: rd(o)
                if mn.startswith(('s_add', 's_sub', 's_and', 's_or', 's_xor', 's_lshl', 's_lshr', 's_ashr', 's_min', 's_max', 's_andn2', 's_not', 's_bfe')):
                    self.sw.add('scc')
                if mn in ('s_addc_u32', 's_subb_u32', 's_cselect_b32', 's_cselect_b64'): self.sr.add('scc')
                if 'saveexec' in mn:
                    self.sw.add('exec'); self.sr.add('exec')
                if mn in ('s_addk_i32', 's_mulk_i32'): rd(ops[0])
        else:
            raise ValueError('unknown instruction: ' + text)
    def nopcount(self):
        if self.kind == 'nop':
            return int(self.text.split()[1], 0) + 1
        return 1
    def is_valu(self):
        return self.kind in ('valu', 'trans', 'permlane', 'readlane')

class Label:
    def __init__(self, name, clean=False):
        self.name = name; self.clean = clean; self.kind = 'label'
        self.text = name + ':'

class Raw:
    def __init__(self, text):
        self.text = text; self.kind = 'raw'

def need_states(p, c):
    n = 0
    pk, ck = p.kind, c.kind
    c_valu = c.is_valu()
    if pk == 'mfma':
        far = 8 if p.passes == 4 else 12
        ov = 6 if p.passes == 4 else 10
        D = p.vw
        if ck == 'mfma':
            if D & c.srcab: n = max(n, far)
            if D & c.srcc:
                if c.srcc == D and c.passes == p.passes: pass
                else: n = max(n, ov)
            if (D & c.vw) and not (c.srcc == D and c.vw == D and c.passes == p.passes):
                n = max(n, ov)
        elif c_valu:
            if D & (c.vr | c.vw): n = max(n, far)
            if p.srcc & c.vw: n = max(n, 3 if p.passes == 4 else 7)
        elif ck in ('dsr', 'dsw', 'vload', 'vstore', 'dma'):
            if D & (c.vr | c.vw): n = max(n, far)
            if ck in ('dsr', 'vload') and (p.srcc & c.vw): n = max(n, 3 if p.passes == 4 else 7)
    elif p.is_valu():
        W = p.vw
        if ck == 'mfma' and (W & c.vr): n = max(n, 2)
        if c_valu and c.dpp and (W & c.vr): n = max(n, 2)
        if ck == 'permlane' and (W & c.vr): n = max(n, 2)
        if ck == 'readlane' and (W & c.vr): n = max(n, 1)
        if pk == 'trans' and c_valu and c.kind != 'trans' and (W & c.vr): n = max(n, 1)
        if pk == 'trans' and ck in ('mfma',) and (W & c.vr): n = max(n, 2)
        if p.mn.startswith('v_dot') and (W & (c.vr | c.vw)) and not (c.mn == p.mn):
            n = max(n, 3)
        SW = p.sw
        if SW:
            if (c_valu or ck == 'mfma') and (SW & c.sr): n = max(n, 2)
            if ck in ('vload', 'vstore', 'dma') and (SW & c.sr): n = max(n, 5)
            if ck in ('salu', 'branch', 'smem') and (SW & c.sr): n = max(n, 4)
            if 'exec' in SW and ck == 'mfma': n = max(n, 4)
            if 'exec' in SW and c_valu and c.dpp: n = max(n, 5)
    elif pk == 'vstore' and p.wide:
        if p.srcc & c.vw: n = max(n, 2)
    elif pk == 'salu':
        if 'm0' in p.sw and ck == 'dma': n = max(n, 1)
    return n

MAXLOOK = 16

def insert_hazard_nops(items, init_hist=None):
    out = []
    hist = list(init_hist or [])
    nn = 0
    for it in items:
        if not isinstance(it, Ins):
            out.append(it); continue
        need = 0
        dist = 0
        for p in reversed(hist):
            if dist >= MAXLOOK: break
            r = need_states(p, it)
            if r > dist: need = max(need, r - dist)
            dist += p.nopcount()
        while need > 0:
            k = min(need, 16)
            nop = Ins(f's_nop {k-1}')
            out.append(nop); hist.append(nop); need -= k; nn += k
        out.append(it); hist.append(it)
        if len(hist) > 40: hist = hist[-40:]
    return out, hist, nn

def flush_nops(hist):
    need = 0; dist = 0
    for p in reversed(hist):
        if dist >= MAXLOOK: break
        r = 0
        if p.kind == 'mfma': r = 8 if p.passes == 4 else 12
        elif p.is_valu(): r = 5 if p.sw - {'exec'} else 2
        elif p.kind == 'vstore' and p.wide: r = 2
        elif p.kind == 'salu' and 'm0' in p.sw: r = 1
        if r > dist: need = max(need, r - dist)
        dist += p.nopcount()
    return need

def insert_waits(items, lgkm_max=15, vm_auto=True, merge_t=170):
    out = []
    lq = []
    vq = []
    smem_pending = set()
    now = 0; lt = []
    for it in items:
        if isinstance(it, Label):
            out.append(it); continue
        if not isinstance(it, Ins):
            out.append(it); continue
        if it.kind == 'waitcnt':
            m = re.search(r'lgkmcnt\((\d+)\)', it.text)
            if m:
                n = int(m.group(1)); lq = lq[len(lq)-n:] if n < len(lq) and n > 0 else ([] if n == 0 else lq)
                lt = lt[len(lt)-len(lq):] if lq else []
                if n == 0: smem_pending = set()
            m = re.search(r'vmcnt\((\d+)\)', it.text)
            if m:
                n = int(m.group(1)); vq = vq[len(vq)-n:] if n < len(vq) and n > 0 else ([] if n == 0 else vq)
            out.append(it); continue
        touch = it.vr | it.vw
        wl = None
        for i in range(len(lq) - 1, -1, -1):
            if lq[i] & touch:
                wl = len(lq) - 1 - i; break
        wv = None
        if vm_auto:
            for i in range(len(vq) - 1, -1, -1):
                if vq[i] & touch:
                    wv = len(vq) - 1 - i; break
        st = (it.sr | it.sw)
        if smem_pending & st:
            wl = 0
        if smem_pending and wl is not None: wl = 0
        if wl is not None and merge_t:
            while wl > 0 and now - lt[len(lq) - wl] >= merge_t: wl -= 1
        if wl is not None or wv is not None:
            s = 's_waitcnt'
            if wv is not None:
                wv = min(wv, 63); s += f' vmcnt({wv})'; vq = vq[len(vq)-wv:] if wv > 0 else []
            if wl is not None:
                wl = min(wl, lgkm_max); s += f' lgkmcnt({wl})'; lq = lq[len(lq)-wl:] if wl > 0 else []
                lt = lt[len(lt)-len(lq):] if lq else []
                if wl == 0: smem_pending = set()
            out.append(Ins(s))
        out.append(it)
        now += ISSUE_EST(it)
        if it.kind == 'dsr': lq.append(set(it.vw)); lt.append(now)
        elif it.kind == 'dsw': lq.append(set()); lt.append(now)
        elif it.kind == 'smem': smem_pending |= it.sw;
        elif it.kind == 'vload': vq.append(set(it.vw))
        elif it.kind in ('vstore', 'dma'): vq.append(set())
    return out

def ISSUE_EST(it):
    if it.kind == 'nop': return 4 * it.nopcount()
    if it.kind == 'mfma': return 4 * it.passes if False else 8
    return ISSUE.get(it.kind, 4)

import subprocess, os, tempfile
PROMOTABLE = ('v_mul_f32', 'v_add_f32', 'v_sub_f32', 'v_fmac_f32', 'v_mov_b32', 'v_add_u32', 'v_and_b32', 'v_or_b32', 'v_max_f32',
              'v_exp_f32', 'v_rcp_f32', 'v_rsq_f32', 'v_lshlrev_b32', 'v_lshrrev_b32', 'v_sub_u32', 'v_mul_u32_u24', 'v_min_u32')
def instr_sizes(ins_list):
    txt = '.amdgcn_target "amdgcn-amd-amdhsa--gfx950"\n.text\n'
    labs = set()
    for it in ins_list:
        if it.kind == 'branch' and it.mn != 's_endpgm':
            txt += it.mn + ' LX\n'
        else: txt += it.text + '\n'
    txt += 'LX:\ns_endpgm\n'
    d = tempfile.mkdtemp()
    open(d + '/a.s', 'w').write(txt)
    r = subprocess.run(['clang', '-x', 'assembler', '-target', 'amdgcn-amd-amdhsa', '-mcpu=gfx950', '-c', d + '/a.s', '-o', d + '/a.o'], capture_output=True, text=True)
    assert r.returncode == 0, r.stderr[:2000]
    o = subprocess.run(['llvm-objdump', '-d', '--mcpu=gfx950', d + '/a.o'], capture_output=True, text=True).stdout
    sizes = []
    for l in o.split('\n'):
        m = re.search(r'// ([0-9A-F]{12}): ((?:[0-9A-F]{8} ?)+)', l)
        if m: sizes.append(4 * len(m.group(2).split()))
    return sizes[:len(ins_list)]

def align_pass(items, start_label, end_pred):
    idx0 = next(i for i, it in enumerate(items) if isinstance(it, Label) and it.name == start_label)
    idx1 = next(i for i in range(idx0 + 1, len(items)) if isinstance(items[i], Ins) and end_pred(items[i]))
    seg = [i for i in range(idx0 + 1, idx1 + 1) if isinstance(items[i], Ins)]
    sizes = instr_sizes([items[i] for i in seg])
    assert len(sizes) == len(seg), (len(sizes), len(seg))
    addr = 0; run = []; mis = 0; fixed = 0
    for k, i in enumerate(seg):
        sz = sizes[k]; it = items[i]
        if sz == 8:
            if addr % 8 == 4:
                cand = [j for j in run if items[j].mn in PROMOTABLE and not items[j].dpp]
                if cand:
                    j = cand[-1]
                    t = items[j].text
                    items[j] = Ins(t.replace(items[j].mn, items[j].mn + '_e64', 1))
                    addr += 4; fixed += 1
                else: mis += 1
            run = []
        else:
            run.append(i)
        addr += sz
    return items

ISSUE = {'valu': 4, 'trans': 8, 'permlane': 8, 'readlane': 4, 'mfma': 8, 'dsr': 4, 'dsw': 6, 'vload': 4, 'vstore': 4, 'dma': 4,
         'salu': 4, 'smem': 4, 'nop': 4, 'waitcnt': 4}

def latency(p, c, LDS_LAT=130):
    base = ISSUE.get(p.kind, 4)
    ns = need_states(p, c)
    lat = base + 4 * ns if ns else base
    if p.kind == 'mfma':
        pipe = 4 * p.passes
        if c.kind == 'mfma' and ns == 0 and (p.vw & c.srcc): lat = pipe
        elif ns: lat = max(lat, 4 * (ns + 1))
    if p.kind == 'dsr' and (p.vw & (c.vr | c.vw)): lat = LDS_LAT
    if p.kind == 'vload' and (p.vw & (c.vr | c.vw)): lat = 800
    return lat

LDS_GAP = 16
def schedule(ins, LDS_LAT=150, keep_order_kinds=('vstore', 'dma', 'vload'), verbose=False, prio_boost=None, trace=None):
    n = len(ins)
    preds = [[] for _ in range(n)]; succs = [[] for _ in range(n)]
    lastw = {}; readers = {}
    def key_sets(i):
        I = ins[i]
        R = {('v', r) for r in I.vr} | {('s', r) for r in I.sr if r != 'exec'}
        W = {('v', r) for r in I.vw} | {('s', r) for r in I.sw}
        return R, W
    last_vm = None; last_dsw = None; ds_since = []
    for i in range(n):
        R, W = key_sets(i)
        deps = set()
        for r in R:
            if r in lastw: deps.add(lastw[r])
        for w in W:
            if w in lastw: deps.add(lastw[w])
            for j in readers.get(w, ()): deps.add(j)
        I = ins[i]
        if I.kind in keep_order_kinds or (I.kind == 'salu' and 'm0' in I.sw):
            if last_vm is not None: deps.add(last_vm)
            last_vm = i
        deps.discard(i)
        for d in deps:
            preds[i].append(d); succs[d].append(i)
        for w in W:
            lastw[w] = i; readers[w] = []
        for r in R:
            if r not in W: readers.setdefault(r, []).append(i)
    lat = {}
    for i in range(n):
        for d in preds[i]:
            p, c = ins[d], ins[i]
            true_dep = bool((p.vw & (c.vr | c.vw)) or (p.sw & (c.sr | c.sw)))
            if true_dep or need_states(p, c): l = latency(p, c, LDS_LAT)
            else: l = ISSUE.get(p.kind, 4) if p.kind != 'mfma' else 8
            lat[(d, i)] = l
    prio = [0] * n
    for i in range(n - 1, -1, -1):
        best = 0
        for s in succs[i]: best = max(best, lat[(i, s)] + prio[s])
        prio[i] = best + (0 if succs[i] else ISSUE.get(ins[i].kind, 4))
        if prio_boost: prio[i] += prio_boost(ins[i])
    npred = [len(p) for p in preds]
    ready_t = [0] * n
    ready = [i for i in range(n) if npred[i] == 0]
    t = 0; pipe_free = 0; lds_free = 0
    order = []
    while ready:
        def est(i):
            e = max(t, ready_t[i])
            if ins[i].kind == 'mfma': e = max(e, pipe_free)
            if ins[i].kind in ('dsr', 'dsw'): e = max(e, lds_free)
            return e
        emin = min(est(i) for i in ready)
        cands = [i for i in ready if est(i) <= emin]
        cands.sort(key=lambda i: (-prio[i], i))
        i = cands[0]
        st = est(i)
        if trace is not None: trace.append((st, st - t, ins[i].text))
        order.append(i); ready.remove(i)
        I = ins[i]
        t = st + ISSUE.get(I.kind, 4)
        if I.kind == 'mfma': pipe_free = st + 4 * I.passes
        if I.kind in ('dsr', 'dsw'): lds_free = st + LDS_GAP
        for s in succs[i]:
            ready_t[s] = max(ready_t[s], st + lat[(i, s)])
            npred[s] -= 1
            if npred[s] == 0: ready.append(s)
    assert len(order) == n
    if verbose: print(f'; scheduled {n} instrs, est cycles {t}')
    return [ins[i] for i in order], t


def schedule2(ins, LDS_LAT=170, lds_gap=8, keep_order_kinds=('vstore', 'dma', 'vload'), trace=None, boost=None, vmem_cost=16):
    n = len(ins)
    preds = [[] for _ in range(n)]; succs = [[] for _ in range(n)]
    lastw = {}; readers = {}
    last_vm = None
    for i in range(n):
        I = ins[i]
        R = {('v', r) for r in I.vr} | {('s', r) for r in I.sr if r != 'exec'}
        W = {('v', r) for r in I.vw} | {('s', r) for r in I.sw}
        deps = set()
        for r in R:
            if r in lastw: deps.add(lastw[r])
        for w in W:
            if w in lastw: deps.add(lastw[w])
            for j in readers.get(w, ()): deps.add(j)
        if I.kind in keep_order_kinds or (I.kind == 'salu' and 'm0' in I.sw):
            if last_vm is not None: deps.add(last_vm)
            last_vm = i
        deps.discard(i)
        for d in deps:
            preds[i].append(d); succs[d].append(i)
        for w in W:
            lastw[w] = i; readers[w] = []
        for r in R:
            if r not in W: readers.setdefault(r, []).append(i)
    def cost(I):
        if I.kind in ('vstore', 'dma'): return vmem_cost
        return ISSUE.get(I.kind, 4)
    lat = {}; nst = {}
    for i in range(n):
        for d in preds[i]:
            p, c = ins[d], ins[i]
            ns = need_states(p, c)
            true_dep = bool((p.vw & (c.vr | c.vw)) or (p.sw & (c.sr | c.sw)))
            l = cost(p)
            if p.kind == 'mfma':
                if c.kind == 'mfma' and ns == 0 and (p.vw & c.srcc): l = 4 * p.passes
                elif ns: l = 4 * (ns + 1)
            if p.kind == 'dsr' and (p.vw & (c.vr | c.vw)): l = LDS_LAT
            lat[(d, i)] = l; nst[(d, i)] = ns
    prio = [0] * n
    for i in range(n - 1, -1, -1):
        best = 0
        for s_ in succs[i]: best = max(best, max(lat[(i, s_)], 4 * (nst[(i, s_)] + 1)) + prio[s_])
        prio[i] = best + (0 if succs[i] else cost(ins[i]))
        if boost: prio[i] += boost(ins[i])
    npred = [len(p) for p in preds]
    ready_t = [0] * n
    pos = [None] * n
    ready = [i for i in range(n) if npred[i] == 0]
    t = 0; pipe_free = 0; lds_free = 0; k = 0
    order = []
    while ready:
        def est(i):
            e = max(t, ready_t[i])
            kd = ins[i].kind
            if kd == 'mfma': e = max(e, pipe_free)
            if kd in ('dsr', 'dsw'): e = max(e, lds_free)
            need = 0
            for d in preds[i]:
                ns = nst[(d, i)]
                if ns: need = max(need, ns - (k - pos[d] - 1))
            if need > 0: e = max(e, t + 4 * need)
            return e
        E = {i: est(i) for i in ready}
        emin = min(E.values())
        cands = [i for i in ready if E[i] <= emin]
        mf = [i for i in cands if ins[i].kind == 'mfma']
        if mf:
            i = max(mf, key=lambda j: (prio[j], -j))
        else:
            mfs = [i for i in ready if ins[i].kind == 'mfma']
            pick = cands
            if mfs:
                em = min(E[j] for j in mfs)
                fit = [j for j in cands if emin + cost(ins[j]) <= em]
                if fit: pick = fit
            i = max(pick, key=lambda j: (prio[j], -j))
        st = E[i]
        if trace is not None: trace.append((st, st - t, ins[i].text))
        order.append(i); ready.remove(i)
        pos[i] = k; k += 1
        I = ins[i]
        t = st + cost(I)
        if I.kind == 'mfma': pipe_free = st + 4 * I.passes
        if I.kind in ('dsr', 'dsw'): lds_free = st + lds_gap
        for s_ in succs[i]:
            ready_t[s_] = max(ready_t[s_], st + lat[(i, s_)])
            npred[s_] -= 1
            if npred[s_] == 0: ready.append(s_)
    assert len(order) == n
    return [ins[i] for i in order], t


class Bundle:
    def __init__(self, subs, cost):
        self.subs = subs; self.cost = cost
        self.kind = subs[0].kind; self.mn = subs[0].mn; self.text = ' | '.join(x.text for x in subs)
        self.vr = set().union(*[x.vr for x in subs]); self.vw = set().union(*[x.vw for x in subs])
        self.sr = set().union(*[x.sr for x in subs]); self.sw = set().union(*[x.sw for x in subs])
        self.dpp = False; self.passes = 0; self.srcc = set(); self.srcab = set(); self.wide = False; self.tag = None; self.pk = subs[0].pk
    def nopcount(self): return len(self.subs)
    def is_valu(self): return self.subs[0].is_valu()

PK_DRAIN = 14
PK_HOLD = 0
COST = dict(valu=4, trans=8, permlane=8, readlane=4, mfma=8, dsr=10, dsw=18, vload=10, vstore=30, dma=18, salu=4, smem=4, nop=4, waitcnt=4)

def schedule3(ins, LDS_LAT=170, vm_gap=0, keep_order_kinds=('vstore', 'dma', 'vload'), trace=None, boost=None, tail_lat=None, VLOAD_LAT=None):
    ins = fuse_scc(ins)
    n = len(ins)
    preds = [[] for _ in range(n)]; succs = [[] for _ in range(n)]
    lastw = {}; readers = {}
    last_vm = None
    for i in range(n):
        I = ins[i]
        R = {('v', r) for r in I.vr} | {('s', r) for r in I.sr if r != 'exec'}
        W = {('v', r) for r in I.vw} | {('s', r) for r in I.sw}
        deps = set()
        for r in R:
            if r in lastw: deps.add(lastw[r])
        for w in W:
            if w in lastw: deps.add(lastw[w])
            for j in readers.get(w, ()): deps.add(j)
        if I.kind in keep_order_kinds or (I.kind == 'salu' and 'm0' in I.sw):
            if last_vm is not None: deps.add(last_vm)
            last_vm = i
        deps.discard(i)
        for d in deps:
            preds[i].append(d); succs[d].append(i)
        for w in W:
            lastw[w] = i; readers[w] = []
        for r in R:
            if r not in W: readers.setdefault(r, []).append(i)
    def cost(I):
        if isinstance(I, Bundle): return I.cost
        return COST.get(I.kind, 4)
    lat = {}; nst = {}
    for i in range(n):
        for d in preds[i]:
            p, c = ins[d], ins[i]
            ns = need_states(p, c)
            l = cost(p)
            if p.kind == 'mfma':
                if c.kind == 'mfma' and ns == 0 and (p.vw & c.srcc): l = 4 * p.passes
                elif ns: l = 4 * (ns + 1)
            if p.kind == 'dsr' and (p.vw & (c.vr | c.vw)): l = LDS_LAT + cost(p)
            if p.kind == 'vload' and VLOAD_LAT and (p.vw & (c.vr | c.vw)): l = VLOAD_LAT
            if p.kind == 'smem' and (p.sw & c.sr): l = 700
            lat[(d, i)] = l; nst[(d, i)] = ns
    prio = [0] * n
    for i in range(n - 1, -1, -1):
        best = 0
        for s_ in succs[i]: best = max(best, max(lat[(i, s_)], 4 * (nst[(i, s_)] + 1)) + prio[s_])
        if not succs[i]: best = cost(ins[i])
        if tail_lat: best = max(best, tail_lat(ins[i]))
        prio[i] = best
        if boost: prio[i] += boost(ins[i])
    npred = [len(p) for p in preds]
    ready_t = [0] * n
    pos = [None] * n
    ready = [i for i in range(n) if npred[i] == 0]
    t = 0; pipe_free = 0; vm_free = 0; k = 0; mf_done = -100
    order = []
    VM = ('vstore', 'dma', 'vload')
    while ready:
        def est(i):
            e = max(t, ready_t[i])
            kd = ins[i].kind
            if kd == 'mfma': e = max(e, pipe_free)
            if ins[i].pk: e = max(e, mf_done + PK_DRAIN)
            if kd in VM: e = max(e, vm_free)
            need = 0
            for d in preds[i]:
                ns = nst[(d, i)]
                if ns: need = max(need, ns - (k - pos[d] - ins[d].nopcount()))
            if need > 0: e = max(e, t + 4 * need)
            return e
        E = {i: est(i) for i in ready}
        pool = ready
        pks = [i for i in ready if ins[i].pk and max(t, ready_t[i]) <= t + PK_HOLD]
        if pks:
            pool2 = [i for i in ready if ins[i].kind != 'mfma']
            pool = pool2
        emin = min(E[i] for i in pool)
        cands = [i for i in pool if E[i] <= emin]
        mf = [i for i in cands if ins[i].kind == 'mfma']
        pkc = [i for i in cands if ins[i].pk]
        if pkc:
            i = max(pkc, key=lambda j: (prio[j], -j))
        elif mf:
            i = max(mf, key=lambda j: (prio[j], -j))
        else:
            mfs = [i for i in pool if ins[i].kind == 'mfma'] + pks
            pick = cands
            if mfs:
                em = min(E[j] for j in mfs)
                fit = [j for j in cands if emin + cost(ins[j]) <= em]
                if fit: pick = fit
            i = max(pick, key=lambda j: (prio[j], -j))
        st = E[i]
        if trace is not None: trace.append((st, st - t, ins[i].text))
        order.append(i); ready.remove(i)
        pos[i] = k; k += ins[i].nopcount()
        I = ins[i]
        t = st + cost(I)
        if I.kind == 'mfma': pipe_free = st + 4 * I.passes; mf_done = pipe_free
        if I.pk: pipe_free = max(pipe_free, st + cost(I))
        if I.kind in VM: vm_free = st + (vm_gap(I) if callable(vm_gap) else vm_gap)
        for s_ in succs[i]:
            ready_t[s_] = max(ready_t[s_], st + lat[(i, s_)])
            npred[s_] -= 1
            if npred[s_] == 0: ready.append(s_)
    assert len(order) == n
    out = []
    for i in order:
        if isinstance(ins[i], Bundle): out.extend(ins[i].subs)
        else: out.append(ins[i])
    return out, t


def fuse_scc(items):
    out = []; i = 0; n = len(items)
    last_w = None
    groups = []
    for k, it in enumerate(items):
        if isinstance(it, Bundle): continue
        if 'scc' in it.sr:
            assert last_w is not None
            if groups and groups[-1][0] <= last_w <= groups[-1][1]: groups[-1][1] = k
            else: groups.append([last_w, k])
        if 'scc' in it.sw: last_w = k
    k = 0; gi = 0
    while k < n:
        if gi < len(groups) and k == groups[gi][0]:
            a, b = groups[gi]; gi += 1
            subs = items[a:b+1]
            assert all(not isinstance(x, Bundle) for x in subs)
            bd = Bundle(subs, 4 * len(subs)); bd.tag = subs[0].tag
            bd.kind = 'salu'
            bd.sr.discard('scc'); bd.sw.discard('scc')
            out.append(bd); k = b + 1
        else:
            it = items[k]
            if not isinstance(it, Bundle) and ('scc' in it.sw or 'scc' in it.sr):
                import copy
                it.sw = set(it.sw) - {'scc'}; it.sr = set(it.sr) - {'scc'}
            out.append(it); k += 1
    return out
```
